```python
import torch

def _softmax(x, axis=-1):
    return torch.softmax(x, dim=axis)
def _gelu(x):
    return torch.nn.functional.gelu(x, approximate="tanh")
def _silu(x):
    return torch.nn.functional.silu(x)
def _sigmoid(x):
    return torch.sigmoid(x)
def _layernorm(x, axis=-1, eps=1e-5):
    m = x.mean(dim=axis, keepdim=True)
    v = x.var(dim=axis, keepdim=True, unbiased=False)
    return (x - m) / torch.sqrt(v + eps)
def _scatter_add(tgt, idx, src, axis=0):
    return tgt.clone().index_add_(axis, idx, src)
def _segment_sum(src, seg, n):
    out = torch.zeros((n,) + src.shape[1:], dtype=src.dtype)
    return out.index_add_(0, seg, src)
def _pad(x, pw):
    flat = tuple(v for pair in reversed(pw) for v in pair)
    return torch.nn.functional.pad(x, flat)

kernel_name = 'recurrent_scan__sliding_block_cached__dense_activation_gelu__prompt'

def setup_inputs():

    _w = (lambda a: (lambda t: t.to(torch.bfloat16) if t.is_floating_point() else t)(torch.as_tensor(a)))
    def _A_setup():
        B, Sq, D = 1, 2048, 1024
        Hq, Hkv, Sk, Dh = 32, 4, 2048, 128
        assert Hq % Hkv == 0, (Hq, Hkv)
        return {
            "x": _w((lambda *s: torch.randn(*s, dtype=torch.bfloat16) * 0.05)(B, Sq, D)),
            "k_cache": _w((lambda *s: torch.randn(*s, dtype=torch.bfloat16) * 1.6)(B, Hkv, Sk, Dh)),
            "v_cache": _w((lambda *s: torch.randn(*s, dtype=torch.bfloat16) * 0.8)(B, Hkv, Sk, Dh)),
            "wq": _w((lambda *s: torch.randn(*s, dtype=torch.bfloat16) * 1.6)(D, Hq * Dh) * (D ** -0.5)),
            "wo": _w((lambda *s: torch.randn(*s, dtype=torch.bfloat16) * 0.8)(Hq * Dh, D) * ((Hq * Dh) ** -0.5)),
        }
    _A_in = _A_setup()

    def _B_setup():
        B, S, D, F = 1, 2048, 1024, 3584
        return {
            "x": _w((lambda *s: torch.randn(*s, dtype=torch.bfloat16) * 0.05)(B, S, D)),
            "w1": _w((lambda *s: torch.randn(*s, dtype=torch.bfloat16) * 1.6)(D, F) * (D ** -0.5)),
            "b1": _w((lambda *s: torch.randn(*s, dtype=torch.bfloat16) * 1.6)(F) * 0.01),
            "w2": _w((lambda *s: torch.randn(*s, dtype=torch.bfloat16) * 0.2)(F, D) * (F ** -0.5)),
            "b2": _w((lambda *s: torch.randn(*s, dtype=torch.bfloat16) * 0.2)(D) * 0.01),
        }
    _B_in = _B_setup()

    return {
        "A_x": _A_in["x"],
        "A_k_cache": _A_in["k_cache"],
        "A_v_cache": _A_in["v_cache"],
        "A_wq": _A_in["wq"],
        "A_wo": _A_in["wo"],
        "B_x": _B_in["x"],
        "B_w1": _B_in["w1"],
        "B_b1": _B_in["b1"],
        "B_w2": _B_in["w2"],
        "B_b2": _B_in["b2"],
    }

def reference(A_x, A_k_cache, A_v_cache, A_wq, A_wo, B_x, B_w1, B_b1, B_w2, B_b2):
    def _A_ref(x, k_cache, v_cache, wq, wo):
        B, Sq, D = x.shape
        Hq, Dh = 32, 128
        Hkv, Sk = k_cache.shape[1], k_cache.shape[2]
        W = min(4096, max(256, Sk // 4))
        rep = Hq // Hkv
        q = (lambda x, *d: x.permute(*d))((x @ wq).reshape(B, Sq, Hq, Dh), 0, 2, 1, 3)
        k = (lambda x, n, axis: torch.repeat_interleave(x, n, dim=axis))(k_cache[:, :, Sk - W:, :], rep, axis=1)
        v = (lambda x, n, axis: torch.repeat_interleave(x, n, dim=axis))(v_cache[:, :, Sk - W:, :], rep, axis=1)
        scores = torch.einsum("bhqd,bhkd->bhqk", q, k) * (Dh ** -0.5)
        p = _softmax(scores, axis=-1)
        o = torch.einsum("bhqk,bhkd->bhqd", p, v)
        return (lambda x, *d: x.permute(*d))(o, 0, 2, 1, 3).reshape(B, Sq, Hq * Dh) @ wo

    def _B_ref(x, w1, b1, w2, b2):
        h = torch.einsum("bsd,df->bsf", x, w1) + b1
        h = _gelu(h)
        return torch.einsum("bsf,fd->bsd", h, w2) + b2

    x = A_x
    xn = _layernorm(x, axis=-1)
    s = _A_ref(xn, A_k_cache, A_v_cache, A_wq, A_wo)
    g = _silu(_B_ref(xn, B_w1, B_b1, B_w2, B_b2))
    return x + s * g
```

```python
import sys, struct, math

NAME = "recurrent_scan__sliding_block_cached__dense_activation_gelu__prompt"

WS_XN = 0
WS_KV = 4 << 20
KV_GRP = 17 * 16384
WS_O = 8 << 20
WS_H = 24 << 20
WS_G = 40 << 20
WS_FLAG = 44 << 20
WS_STAMP = 45 << 20
WS_SIZE = 48 << 20

def f2u(f):
    return struct.unpack("<I", struct.pack("<f", f))[0]

class Asm:
    def __init__(self):
        self.L = []
    def __call__(self, s):
        for line in s.split("\n"):
            line = line.strip()
            if line:
                self.L.append(line)
    def nop(self, n):
        while n > 0:
            k = min(n, 16)
            self.L.append(f"s_nop {k-1}")
            n -= k
    def text(self):
        out = []
        for l in self.L:
            if l.endswith(":") or l.startswith("."):
                out.append(l)
            else:
                out.append("    " + l)
        return "\n".join(out)

def vr(b, n=1, k="v"):
    return f"{k}{b}" if n == 1 else f"{k}[{b}:{b+n-1}]"
def ar(b, n=1):
    return vr(b, n, "a")
def sr(b, n=1):
    return vr(b, n, "s")

def srd(A, d, lo, hi, size):
    A(f"s_mov_b32 s{d}, s{lo}\ns_mov_b32 s{d+1}, s{hi}\ns_mov_b32 s{d+2}, {size:#x}\ns_mov_b32 s{d+3}, 0x20000")

def kernel_head(A, name):
    A(f".globl {name}\n.p2align 8\n.type {name},@function\n{name}:")

def kernel_desc(name, vgpr, accum, sgpr=102):
    return f""".amdhsa_kernel {name}
  .amdhsa_next_free_vgpr {vgpr}
  .amdhsa_next_free_sgpr {sgpr}
  .amdhsa_accum_offset {accum}
  .amdhsa_group_segment_fixed_size 0
  .amdhsa_kernarg_size 104
  .amdhsa_user_sgpr_count 2
  .amdhsa_user_sgpr_kernarg_segment_ptr 1
  .amdhsa_system_sgpr_workgroup_id_x 1
.end_amdhsa_kernel"""

class VMQ:
    def __init__(self):
        self.q = []
    def issue(self, tag):
        self.q.append(tag)
    def need(self, pred):
        for i in range(len(self.q) - 1, -1, -1):
            if pred(self.q[i]):
                n = len(self.q) - 1 - i
                assert n <= 63, n
                return n
        return None

STAMP = False
def stamp(A, idx, kid, sbase=90):
    if not STAMP:
        return
    A(f"s_memtime s[{sbase}:{sbase+1}]\ns_waitcnt lgkmcnt(0)")
    A(f"v_mov_b32 v{STAMP_V}, s{sbase}")
    A(f"buffer_store_dword v{STAMP_V}, off, s[{STAMP_SRD}:{STAMP_SRD+3}], s{STAMP_OFF} offset:{idx*4}")

def gen_k0(A):
    kernel_head(A, "k0_kernel")
    A("s_cmp_ge_u32 s2, 256\ns_cbranch_scc1 L_k0_end")
    A("s_load_dwordx2 s[4:5], s[0:1], 0")
    A("s_load_dwordx4 s[24:27], s[0:1], 8")
    A("s_load_dwordx2 s[6:7], s[0:1], 96")
    A("v_and_b32 v1, 63, v0")
    A("v_lshrrev_b32 v2, 6, v0")
    A("v_lshrrev_b32 v3, 5, v0")
    A("v_readfirstlane_b32 s3, v2")
    A("s_lshl_b32 s28, s2, 3")
    A("v_add_u32 v3, s28, v3")
    A("v_and_b32 v4, 31, v0")
    A("v_lshlrev_b32 v5, 11, v3")
    A("v_lshl_add_u32 v5, v4, 4, v5")
    A("s_waitcnt lgkmcnt(0)")
    srd(A, 8, 4, 5, 2048 * 1024 * 2)
    srd(A, 12, 6, 7, WS_SIZE)
    for i in range(4):
        A(f"buffer_load_dwordx4 v[{8+4*i}:{11+4*i}], v5, s[8:11], 0 offen offset:{512*i}")
    A("s_and_b32 s29, s3, 1\ns_lshl_b32 s30, s2, 1\ns_add_u32 s30, s30, s29")
    A("s_lshr_b32 s31, s30, 7")
    A("s_lshr_b32 s32, s30, 3\ns_and_b32 s32, s32, 15")
    A("s_and_b32 s33, s30, 7")
    A("s_lshl_b32 s34, s31, 19\ns_lshl_b32 s35, s32, 13\ns_add_u32 s34, s34, s35\ns_add_u32 s34, s34, %d" % (1536 * 256))
    A(f"s_mul_i32 s36, s31, {KV_GRP}\ns_lshl_b32 s35, s32, 14\ns_add_u32 s36, s36, s35\ns_lshl_b32 s35, s33, 10\ns_add_u32 s36, s36, s35\ns_add_u32 s36, s36, {WS_KV}")
    A("v_lshrrev_b32 v6, 5, v1")
    A("s_cmp_ge_u32 s3, 2\ns_cbranch_scc1 L_k0_v")
    srd(A, 16, 24, 25, 4 * 2048 * 128 * 2)
    A("v_lshlrev_b32 v7, 8, v4")
    A("v_lshl_add_u32 v7, v6, 4, v7")
    A("s_lshl_b32 s35, s33, 5\ns_add_u32 s34, s34, s35")
    A("buffer_load_dwordx4 v[60:63], v7, s[16:19], s34 offen")
    A("s_branch L_k0_kvdone")
    A("L_k0_v:")
    srd(A, 16, 26, 27, 4 * 2048 * 128 * 2)
    A("v_and_b32 v7, 7, v4")
    A("v_bfe_u32 v56, v4, 3, 1\nv_lshl_or_b32 v7, v56, 4, v7")
    A("v_bfe_u32 v56, v4, 4, 1\nv_lshl_or_b32 v7, v56, 3, v7")
    A("v_lshlrev_b32 v7, 1, v7")
    A("v_lshl_add_u32 v7, v6, 10, v7")
    A("s_lshr_b32 s35, s33, 1\ns_lshl_b32 s35, s35, 6\ns_add_u32 s34, s34, s35")
    A("s_and_b32 s35, s33, 1\ns_lshl_b32 s35, s35, 12\ns_add_u32 s34, s34, s35")
    A(f"s_add_u32 s36, s36, {16384 + 8192}")
    for e in range(8):
        off = (8 * (e >> 2) + (e & 3)) * 256
        A(f"buffer_load_ushort v{(64 if e & 1 else 60) + (e >> 1)}, v7, s[16:19], s34 offen offset:{off}")
    A("L_k0_kvdone:")
    A("v_mov_b32 v57, 0")
    A("s_cmp_ge_u32 s2, 128\ns_cbranch_scc1 L_k0_noflag")
    A("s_cmp_lg_u32 s3, 0\ns_cbranch_scc1 L_k0_noflag")
    A(f"s_lshl_b32 s35, s2, 7\ns_add_u32 s35, s35, {WS_FLAG}")
    A("v_lshlrev_b32 v58, 2, v4")
    A("buffer_store_dword v57, v58, s[12:15], s35 offen")
    A("L_k0_noflag:")
    A("v_lshrrev_b32 v56, 6, v3\nv_lshlrev_b32 v56, 17, v56")
    A("v_lshrrev_b32 v57, 2, v4\nv_lshl_add_u32 v56, v57, 12, v56")
    A("v_bfe_u32 v57, v3, 4, 2\nv_lshl_add_u32 v56, v57, 10, v56")
    A("v_and_b32 v57, 3, v4\nv_lshl_add_u32 v56, v57, 8, v56")
    A("v_and_b32 v57, 15, v3\nv_lshl_add_u32 v56, v57, 4, v56")
    A("v_lshlrev_b32 v59, 4, v1")
    A("s_waitcnt vmcnt(0)")
    A("s_cmp_lt_u32 s3, 2\ns_cbranch_scc1 L_k0_nopack")
    for e in range(4):
        A(f"v_lshl_or_b32 v{60+e}, v{64+e}, 16, v{60+e}")
    A("L_k0_nopack:")
    A("buffer_store_dwordx4 v[60:63], v59, s[12:15], s36 offen")
    for i in range(16):
        A(f"v_lshlrev_b32 v{24+2*i}, 16, v{8+i}")
        A(f"v_and_b32 v{25+2*i}, 0xffff0000, v{8+i}")
    def reduce32(acc, tmp):
        for r in (8, 4, 2, 1):
            A("s_nop 1")
            A(f"v_add_f32_dpp v{acc}, v{acc}, v{acc} row_ror:{r} row_mask:0xf bank_mask:0xf")
        A(f"v_mov_b32 v{tmp}, v{acc}\ns_nop 1")
        A(f"v_permlane16_swap_b32 v{acc}, v{tmp}\ns_nop 1")
        A(f"v_add_f32 v{acc}, v{acc}, v{tmp}")
    for c in range(4):
        A(f"v_add_f32 v{8+c}, v{24+c}, v{28+c}")
    for i in range(8, 32):
        A(f"v_add_f32 v{8+(i&3)}, v{8+(i&3)}, v{24+i}")
    A("v_add_f32 v8, v8, v9\nv_add_f32 v10, v10, v11\nv_add_f32 v8, v8, v10")
    reduce32(8, 9)
    A(f"v_mul_f32 v8, {f2u(1.0/1024):#x}, v8")
    for i in range(32):
        A(f"v_sub_f32 v{12+(i&3)}, v{24+i}, v8")
        if i < 4:
            A(f"v_mul_f32 v{16+(i&3)}, v{12+(i&3)}, v{12+(i&3)}")
        else:
            A(f"v_fmac_f32 v{16+(i&3)}, v{12+(i&3)}, v{12+(i&3)}")
    A("v_add_f32 v16, v16, v17\nv_add_f32 v18, v18, v19\nv_add_f32 v16, v16, v18")
    reduce32(16, 17)
    A(f"v_mul_f32 v16, {f2u(1.0/1024):#x}, v16")
    def rbf(r):
        A(f"v_cvt_pk_bf16_f32 v{r}, v{r}, v{r}\nv_lshlrev_b32 v{r}, 16, v{r}")
    rbf(8)
    rbf(16)
    A(f"v_add_f32 v16, {f2u(1e-5):#x}, v16")
    rbf(16)
    A("v_sqrt_f32 v16, v16\ns_nop 0")
    rbf(16)
    A("v_rcp_f32 v16, v16\ns_nop 0")
    for i in range(16):
        a, b = 24 + 2 * i, 25 + 2 * i
        A(f"v_sub_f32 v{a}, v{a}, v8\nv_sub_f32 v{b}, v{b}, v8")
        A(f"v_cvt_pk_bf16_f32 v{b}, v{a}, v{b}")
        A(f"v_lshlrev_b32 v{a}, 16, v{b}\nv_and_b32 v{b}, 0xffff0000, v{b}")
        A(f"v_mul_f32 v{a}, v{a}, v16\nv_mul_f32 v{b}, v{b}, v16")
        A(f"v_cvt_pk_bf16_f32 v{64+i}, v{a}, v{b}")
    for i in range(4):
        A(f"s_mov_b32 s35, {WS_XN + i*32768}")
        A(f"buffer_store_dwordx4 v[{64+4*i}:{67+4*i}], v56, s[12:15], s35 offen")
    A("L_k0_end:\ns_endpgm")

def emit_slots(A, mfmas, fillers):
    for i, (pre, m) in enumerate(mfmas):
        for p in pre:
            A(p() if callable(p) else p)
        A(m)
        for f in fillers.get(i, []):
            A(f() if callable(f) else f)

K1_SLOT = 16640
K1_LDS = 8 * K1_SLOT
LA = 5
TL = 5
SC = math.log2(math.e) / math.sqrt(128.0)
THR = 2.0 ** 24

def gen_k1(A):
    global STAMP_V, STAMP_SRD, STAMP_OFF
    kernel_head(A, "k1_kernel")
    A("s_cmp_ge_u32 s2, 256\ns_cbranch_scc1 L_k1_end")
    A("s_load_dwordx2 s[4:5], s[0:1], 24")
    A("s_load_dwordx4 s[40:43], s[0:1], 48")
    A("s_load_dwordx2 s[6:7], s[0:1], 96")
    A("s_and_b32 s30, s2, 7\ns_lshr_b32 s31, s2, 3\ns_and_b32 s32, s31, 3\ns_lshl_b32 s30, s30, 2\ns_add_u32 s30, s30, s32")
    A("s_lshr_b32 s31, s31, 2")
    A("v_and_b32 v1, 63, v0")
    A("v_lshrrev_b32 v2, 6, v0\ns_nop 0\nv_readfirstlane_b32 s3, v2")
    A("s_lshl_b32 s33, s31, 2\ns_add_u32 s33, s33, s3")
    A("s_lshr_b32 s34, s30, 1\ns_and_b32 s35, s30, 1")
    A("s_mul_i32 s36, s34, 224\ns_mul_i32 s37, s35, 96\ns_add_u32 s37, s37, s36")
    A("s_lshl_b32 s38, s35, 4\ns_add_u32 s38, s38, s36\ns_add_u32 s38, s38, 192")
    A("v_lshrrev_b32 v2, 5, v1\nv_lshlrev_b32 v2, 4, v2")
    A("v_bfe_u32 v3, v1, 4, 1\nv_lshl_add_u32 v2, v3, 2, v2")
    A("s_lshr_b32 s39, s3, 1\ns_lshl_b32 s39, s39, 3\ns_and_b32 s44, s3, 1\ns_lshl_b32 s44, s44, 1\ns_add_u32 s39, s39, s44")
    A("v_add_u32 v2, s39, v2")
    A("v_and_b32 v3, 15, v1")
    A("v_lshlrev_b32 v4, 13, v2\nv_lshl_add_u32 v4, v3, 4, v4")
    A("s_lshl_b32 s44, s30, 8\ns_add_u32 s44, s44, 4096\nv_add_u32 v4, s44, v4")
    A(f"v_add_u32 v5, {8192 - 1056}, v4")
    A("s_movk_i32 s44, 7168\nv_mul_lo_u32 v6, v2, s44")
    A("v_lshl_add_u32 v6, v3, 4, v6")
    A("s_lshl_b32 s44, s37, 1\ns_lshl_b32 s45, s38, 1\ns_sub_u32 s45, s45, 192")
    A("v_mov_b32 v8, s44\nv_mov_b32 v9, s45\nv_cmp_gt_u32 vcc, 12, v3\ns_nop 1\nv_cndmask_b32 v8, v9, v8, vcc")
    A("v_mov_b32 v9, 0x80000000\nv_cmp_gt_u32 vcc, 14, v3\ns_nop 1\nv_cndmask_b32 v8, v9, v8, vcc")
    A(f"v_add_u32 v6, v6, v8\nv_add_u32 v6, {4096 - 2080}, v6")
    A(f"v_add_u32 v7, {7168 - 1056}, v6")
    A("v_lshlrev_b32 v8, 4, v1")
    A("v_bfe_u32 v9, v1, 3, 2")
    A("s_movk_i32 s44, 4160\nv_mul_lo_u32 v9, v9, s44")
    A("v_bfe_u32 v10, v1, 2, 1\ns_movk_i32 s44, 1056\nv_mul_lo_u32 v10, v10, s44\nv_add_u32 v9, v9, v10")
    A("v_lshrrev_b32 v10, 5, v1\nv_lshl_add_u32 v9, v10, 9, v9")
    A("v_and_b32 v10, 3, v1\nv_lshl_add_u32 v9, v10, 3, v9")
    A(f"v_add_u32 v10, {4 * K1_SLOT}, v9")
    A("v_lshrrev_b32 v11, 4, v1\nv_lshlrev_b32 v11, 3, v11")
    A("s_lshl_b32 s44, s38, 1\nv_add_u32 v12, s44, v11")
    A("s_lshl_b32 s44, s37, 1\nv_add_u32 v11, s44, v11")
    VWQ = (4, 5); VW1 = (6, 7); VX = 8; VTR = (9, 10)
    A("s_waitcnt lgkmcnt(0)")
    A("s_sub_u32 s4, s4, 4096\ns_subb_u32 s5, s5, 0")
    A("s_sub_u32 s40, s40, 4096\ns_subb_u32 s41, s41, 0")
    srd(A, 8, 4, 5, 1024 * 4096 * 2 + 4096)
    srd(A, 12, 40, 41, 1024 * 3584 * 2 + 4096)
    srd(A, 16, 6, 7, WS_SIZE)
    srd(A, 20, 42, 43, 3584 * 2)
    A(f"s_lshr_b32 s44, s30, 3\ns_mul_i32 s44, s44, {KV_GRP}\ns_add_u32 s44, s44, {WS_KV}")
    A("s_add_u32 s46, s6, s44\ns_addc_u32 s47, s7, 0")
    srd(A, 48, 46, 47, KV_GRP)
    SX, SWQ, SW1, SKV, SM0, SCNT = 24, 25, 26, 27, 28, 29
    A(f"s_lshl_b32 s{SX}, s33, 17")
    A(f"s_mov_b32 s{SWQ}, 0\ns_mov_b32 s{SW1}, 0")
    A(f"s_lshl_b32 s{SKV}, s3, 12")
    A(f"s_mul_i32 s{SM0}, s3, 4160")
    A("s_lshl_b32 s52, s3, 12")
    STAMP_V, STAMP_SRD, STAMP_OFF = 15, 16, 53
    if STAMP:
        A(f"s_lshl_b32 s53, s2, 2\ns_add_u32 s53, s53, s3\ns_lshl_b32 s53, s53, 6\ns_add_u32 s53, s53, {WS_STAMP}")
    stamp(A, 0, 1)

    ACCQ = 16; ACCH = 144
    def acc(T, tt):
        return (ACCQ + (T * 4 + tt) * 4) if T < 8 else (ACCH + ((T - 8) * 4 + tt) * 4)
    XR = 0
    WR = 128
    NW = 6; WD = 4
    vm = VMQ()

    def x_load(d, tt):
        def f():
            vm.issue(("x", d))
            s = f"buffer_load_dwordx4 {ar(XR + (d % 8) * 16 + tt * 4, 4)}, v{VX}, s[16:19], s{SX} offen offset:{tt*1024}"
            if tt == 3:
                s += f"\ns_add_u32 s{SX}, s{SX}, 4096"
            return s
        return f
    def dma(d, i):
        def f():
            vm.issue(("d", d))
            s = ""
            if d < 32:
                if i == 0:
                    s = f"buffer_load_dwordx4 v{VWQ[0]}, s[8:11], s{SWQ} offen lds"
                elif i == 1:
                    s = f"buffer_load_dwordx4 v{VWQ[1]}, s[8:11], s{SWQ} offen offset:1056 lds\ns_add_u32 s{SWQ}, s{SWQ}, {32*8192}"
                elif i == 2:
                    s = f"buffer_load_dwordx4 v{VW1[0]}, s[12:15], s{SW1} offen offset:2080 lds"
                else:
                    s = f"buffer_load_dwordx4 v{VW1[1]}, s[12:15], s{SW1} offen offset:3136 lds\ns_add_u32 s{SW1}, s{SW1}, {32*7168}"
            else:
                s = f"buffer_load_dwordx4 v{VX}, s[48:51], s{SKV} offen offset:{i*1024} lds"
                if i == 3:
                    s += f"\ns_add_u32 s{SKV}, s{SKV}, 16384"
            return s
        return f
    def set_m0(d):
        return f"s_add_u32 m0, s{SM0 if d < 32 else 52}, {(d % 8) * K1_SLOT}"
    def w_read(n, j):
        ks, T = divmod(n, 15)
        slot = ks % 8
        part, Tl = (0, T) if T < 8 else (1, T - 8)
        off = (slot % 4) * K1_SLOT + part * 2080 + j * 256 + Tl * 32
        return f"ds_read_b64_tr_b16 {ar(WR + (n % NW) * 4 + 2 * j, 2)}, v{VTR[slot // 4]} offset:{off}"

    for T in range(7):
        vm.issue(("b", T))
        if T < 6:
            A(f"buffer_load_dwordx2 v[{acc(8+T,1)}:{acc(8+T,1)+1}], v11, s[20:23], 0 offen offset:{T*32}")
        else:
            A(f"buffer_load_dwordx2 v[{acc(8+T,1)}:{acc(8+T,1)+1}], v12, s[20:23], 0 offen")
    assert LA == TL
    for t in range(-LA, 0):
        A(set_m0(t + LA))
        for i in range(4):
            A(x_load(t + TL, i)())
            A(dma(t + LA, i)())
    for r in range(ACCQ, ACCQ + 128):
        A(f"v_mov_b32 v{r}, 0")
    A(f"s_waitcnt vmcnt({vm.need(lambda t: t[0] == 'b')})")
    for T in range(7):
        s = acc(8 + T, 1); d = acc(8 + T, 0)
        A(f"v_lshlrev_b32 v{d}, 16, v{s}\nv_and_b32 v{d+1}, 0xffff0000, v{s}")
        A(f"v_lshlrev_b32 v{d+2}, 16, v{s+1}\nv_and_b32 v{d+3}, 0xffff0000, v{s+1}")
        for tt in range(1, 4):
            for r in range(4):
                A(f"v_mov_b32 v{acc(8+T,tt)+r}, v{d+r}")
    A(f"s_waitcnt vmcnt({vm.need(lambda t: t[0] == 'd' and t[1] <= 1)})")
    A("s_barrier")
    for n in range(WD):
        A(w_read(n, 0)); A(w_read(n, 1))
    stamp(A, 1, 1)

    def kstep(A, t):
        mf = []; fill = {}
        def addf(g, s):
            fill.setdefault(g, []).append(s)
        for T in range(15):
            n = t * 15 + T
            for tt in range(4):
                pre = []
                if tt == 0:
                    out = 2 * min(WD - 1, 32 * 15 - 1 - n)
                    if T == 0:
                        pre.append(lambda t=t, out=out: f"s_waitcnt vmcnt({vm.need(lambda x: x[0] == 'x' and x[1] == t)}) lgkmcnt({out})")
                    else:
                        pre.append(f"s_waitcnt lgkmcnt({out})")
                a = acc(T, tt)
                mf.append((pre, f"v_mfma_f32_16x16x32_bf16 v[{a}:{a+3}], {ar(WR + (n % NW) * 4, 4)}, {ar(XR + (t % 8) * 16 + tt * 4, 4)}, v[{a}:{a+3}]"))
            g0 = T * 4
            if T == 15 - WD - 1 and t % 2 == 1:
                addf(g0 + 2, lambda t=t: f"s_waitcnt vmcnt({vm.need(lambda x: x[0] == 'd' and x[1] <= t + 2)})")
                addf(g0 + 3, "s_barrier")
            if n + WD < 32 * 15:
                addf(g0 + 0, w_read(n + WD, 0))
                addf(g0 + 1, w_read(n + WD, 1))
        addf(0 * 4 + 3, set_m0(t + LA))
        ops = []
        for i in range(4):
            if t + TL < 32:
                ops.append(x_load(t + TL, i))
            ops.append(dma(t + LA, i))
        for k, op in enumerate(ops):
            addf((1 + k) * 4 + 2, op)
        emit_slots(A, mf, fill)

    bodies = []
    for it in range(4):
        B = Asm()
        for t in range(it * 8, it * 8 + 8):
            kstep(B, t)
        bodies.append(B.L)
    assert bodies[0] == bodies[1] == bodies[2], "loop bodies differ"
    A(f"s_mov_b32 s{SCNT}, 3")
    A("L_k1_g1:")
    A.L += bodies[0]
    A(f"s_sub_u32 s{SCNT}, s{SCNT}, 1\ns_cmp_lg_u32 s{SCNT}, 0\ns_cbranch_scc1 L_k1_g1")
    A.L += bodies[3]
    stamp(A, 2, 1)

    QA = 192
    A(f"s_mov_b32 s44, {f2u(SC):#x}\ns_mov_b32 s45, {f2u(SC):#x}")
    A("s_nop 7")
    for T in range(8):
        for u in range(2):
            a0 = acc(T, 2 * u); a1 = acc(T, 2 * u + 1)
            for a in (a0, a1):
                A(f"v_pk_mul_f32 v[{a}:{a+1}], v[{a}:{a+1}], s[44:45]")
                A(f"v_pk_mul_f32 v[{a+2}:{a+3}], v[{a+2}:{a+3}], s[44:45]")
            for a in (a0, a1):
                A(f"v_cvt_pk_bf16_f32 v{a}, v{a}, v{a+1}")
                A(f"v_cvt_pk_bf16_f32 v{a+1}, v{a+2}, v{a+3}")
        for u in range(2):
            a0 = acc(T, 2 * u); a1 = acc(T, 2 * u + 1)
            if u == 1: A("s_nop 0")
            A(f"v_permlane16_swap_b32 v{a0}, v{a1}")
            A(f"v_permlane16_swap_b32 v{a0+1}, v{a1+1}")
        for u in range(2):
            a0 = acc(T, 2 * u); a1 = acc(T, 2 * u + 1)
            q = QA + (u * 8 + T) * 4
            A(f"v_accvgpr_write_b32 a{q}, v{a0}\nv_accvgpr_write_b32 a{q+1}, v{a0+1}")
            A(f"v_accvgpr_write_b32 a{q+2}, v{a1}\nv_accvgpr_write_b32 a{q+3}, v{a1+1}")
    for r in range(128):
        A(f"v_accvgpr_write_b32 a{r}, 0")
    c1 = -2.0 * math.log2(math.e) * math.sqrt(2.0 / math.pi)
    c2 = c1 * 0.044715
    A(f"s_mov_b32 s44, {f2u(c2):#x}\ns_mov_b32 s45, {f2u(c2):#x}")
    A(f"v_mov_b32 v16, {f2u(c1):#x}\nv_mov_b32 v17, {f2u(c1):#x}")
    A(f"s_mul_i32 s54, s33, {112*4096}\ns_add_u32 s54, s54, {WS_H}")
    A("s_mul_i32 s55, s34, 7\ns_add_u32 s56, s55, 6\ns_lshl_b32 s56, s56, 12\ns_add_u32 s56, s56, s54")
    A("s_mul_i32 s57, s35, 3\ns_add_u32 s55, s55, s57\ns_lshl_b32 s55, s55, 12\ns_add_u32 s55, s55, s54")
    A("s_lshl_b32 s57, s35, 3\nv_add_u32 v11, s57, v8")
    def gelu4(a, t, dst):
        for h in (0, 2):
            A(f"v_pk_mul_f32 v[{t+h}:{t+h+1}], v[{a+h}:{a+h+1}], v[{a+h}:{a+h+1}]")
        for h in (0, 2):
            A(f"v_pk_fma_f32 v[{t+h}:{t+h+1}], v[{t+h}:{t+h+1}], s[44:45], v[16:17]")
        for h in (0, 2):
            A(f"v_pk_mul_f32 v[{t+h}:{t+h+1}], v[{t+h}:{t+h+1}], v[{a+h}:{a+h+1}]")
        for r in range(4):
            A(f"v_exp_f32 v{t+r}, v{t+r}")
        A("s_nop 0")
        for h in (0, 2):
            A(f"v_pk_add_f32 v[{t+h}:{t+h+1}], v[{t+h}:{t+h+1}], 1.0 op_sel_hi:[1,0]")
        for r in range(4):
            A(f"v_rcp_f32 v{t+r}, v{t+r}")
        A("s_nop 0")
        for h in (0, 2):
            A(f"v_pk_mul_f32 v[{t+h}:{t+h+1}], v[{t+h}:{t+h+1}], v[{a+h}:{a+h+1}]")
        A(f"v_cvt_pk_bf16_f32 v{dst}, v{t}, v{t+1}\nv_cvt_pk_bf16_f32 v{dst+1}, v{t+2}, v{t+3}")
    k = 0
    for f in range(4):
        for tt in range(4):
            d = 32 + (k % 8) * 4; k += 1
            gelu4(acc(8 + 2 * f, tt), 20, d)
            if f < 3:
                gelu4(acc(8 + 2 * f + 1, tt), 24, d + 2)
                vm.issue(("h",))
                A(f"buffer_store_dwordx4 v[{d}:{d+3}], v{VX}, s[16:19], s55 offen offset:{tt*1024}")
            else:
                vm.issue(("h",))
                A(f"buffer_store_dwordx2 v[{d}:{d+1}], v11, s[16:19], s56 offen offset:{tt*1024}")
        if f < 2:
            A("s_add_u32 s55, s55, 4096")
    stamp(A, 3, 1)

    S = (64, 80); C = (96, 112); P = (128, 136); E = 144; TS = 160; LS = (162, 163); VKV = 164; TMP = 165
    O = 0; KA = 128; VA = 160
    SRING = 58
    SDM0 = 59
    def qk(u, first=False):
        out = []
        for T in range(8):
            c = ("0" if first else vr(C[u], 16)) if T == 0 else vr(S[u], 16)
            out.append(f"v_mfma_f32_32x32x16_bf16 {vr(S[u],16)}, {ar(KA+4*T,4)}, {ar(QA+(u*8+T)*4,4)}, {c}")
        return out
    def pv(u):
        out = []
        for s in range(2):
            for dt in range(4):
                o = ar(O + (u * 4 + dt) * 16, 16)
                out.append(f"v_mfma_f32_32x32x16_bf16 {o}, {ar(VA+(dt*2+s)*4,4)}, {vr(P[u]+4*s,4)}, {o}")
        return out
    pv_frag = [dt * 2 + s for s in range(2) for dt in range(4)]
    def k_read(T):
        return f"ds_read_b128 {ar(KA+4*T,4)}, v{VKV} offset:{T*1024}"
    def v_read(f):
        return f"ds_read_b128 {ar(VA+4*f,4)}, v{VKV} offset:{8192+f*1024}"
    def softmax_ops(u):
        g = [[] for _ in range(17)]
        for r in range(16):
            g[r].append(f"v_exp_f32 v{E+r}, v{S[u]+r}")
            if r == 1:
                g[r + 1].append(f"v_add_f32 v{TS}, v{E}, v{E+1}")
            elif r > 1:
                g[r + 1].append(f"v_add_f32 v{TS}, v{TS}, v{E+r}")
            if r & 1:
                g[r + 1].append(f"v_cvt_pk_bf16_f32 v{P[u]+(r>>1)}, v{E+r-1}, v{E+r}")
        return g
    site = [0]
    tramps = []
    def check(u):
        n = site[0]; site[0] += 1
        tramps.append((n, u))
        return [f"v_cmp_nle_f32 vcc, v{TS}, v{TMP+1}", f"s_cbranch_vccnz L_k1_tr{n}", f"L_k1_ret{n}:", f"v_add_f32 v{LS[u]}, v{LS[u]}, v{TS}"]

    A(f"v_mov_b32 v{TMP+1}, {f2u(THR):#x}")
    A(f"v_mov_b32 v{LS[0]}, 0\nv_mov_b32 v{LS[1]}, 0")
    A(f"v_mov_b32 v{VKV}, v{VX}")
    for T in range(8):
        A(k_read(T))
    A(f"v_add_u32 v{VKV}, {K1_SLOT}, v{VKV}")
    q0 = qk(0, True); q1 = qk(1, True)
    for T in range(8):
        A(f"s_waitcnt lgkmcnt({7-T})")
        A(q0[T])
    for T in range(8):
        A(q1[T])
        if T > 0: A(k_read(T - 1))
    A(k_read(7))
    for f in pv_frag:
        A(v_read(f))
    A("s_nop 7")
    for u in range(2):
        s = S[u]
        A(f"v_max3_f32 v{TMP}, v{s}, v{s+1}, v{s+2}")
        for r in range(3, 15, 2):
            A(f"v_max3_f32 v{TMP}, v{TMP}, v{s+r}, v{s+r+1}")
        A(f"v_max_f32 v{TMP}, v{TMP}, v{s+15}")
        A(f"v_mov_b32 v{E}, v{TMP}\ns_nop 1")
        A(f"v_permlane32_swap_b32 v{TMP}, v{E}\ns_nop 1")
        A(f"v_max_f32 v{TMP}, v{TMP}, v{E}")
        for r in range(16):
            A(f"v_sub_f32 v{s+r}, v{s+r}, v{TMP}")
        for r in range(16):
            A(f"v_sub_f32 v{C[u]+r}, 0, v{TMP}")
    for g in softmax_ops(0):
        for o in g: A(o)
        A("s_nop 0")
    for o in check(0): A(o)
    A(f"s_mov_b32 s{SRING}, {2*K1_SLOT}")
    A(f"s_mov_b32 s{SDM0}, {LA*K1_SLOT}")
    A(f"s_mov_b32 s{SCNT}, 15")
    stamp(A, 4, 1)

    def body(A, kt, last=False):
        mf = []; fill = {}
        def addf(g, s):
            fill.setdefault(g, []).append(s)
        if not last:
            seq = qk(0) + pv(0) + qk(1) + pv(1)
            for i, m in enumerate(seq):
                pre = []
                if i < 16:
                    pre.append(f"s_waitcnt lgkmcnt({15-i})")
                mf.append((pre, m))
            sm1 = softmax_ops(1); sm0 = softmax_ops(0)
            for g in range(16):
                for o in sm1[g]: addf(g, o)
            for o in sm1[16] : addf(15, "s_nop 0\n" + o if o == sm1[16][0] else o)
            for o in check(1): addf(15, o)
            for g in range(16):
                for o in sm0[g]: addf(16 + g, o)
            for o in sm0[16]: addf(31, "s_nop 0\n" + o if o == sm0[16][0] else o)
            for o in check(0): addf(31, o)
            addf(0, f"v_add_u32 v{VKV}, s{SRING}, v{VX}")
            addf(1, f"s_add_u32 s{SRING}, s{SRING}, {K1_SLOT}\ns_cmp_eq_u32 s{SRING}, {8*K1_SLOT}\ns_cselect_b32 s{SRING}, 0, s{SRING}")
            addf(14, lambda: f"s_waitcnt vmcnt({vm.need(lambda x: x[0] == 'd' and x[1] <= 32 + kt + 2)})")
            addf(14, "s_barrier")
            for T in range(8):
                addf(16 + T + 1, k_read(T))
            for i, f in enumerate(pv_frag):
                addf(min(24 + i + 1, 31), v_read(f))
            addf(2, f"s_add_u32 m0, s52, s{SDM0}")
            addf(3, f"s_add_u32 s{SDM0}, s{SDM0}, {K1_SLOT}\ns_cmp_eq_u32 s{SDM0}, {8*K1_SLOT}\ns_cselect_b32 s{SDM0}, 0, s{SDM0}")
            for i in range(4):
                addf(4 + 2 * i, dma(32 + kt + LA, i))
        else:
            seq = pv(0) + pv(1)
            sm1 = softmax_ops(1)
            for i, m in enumerate(seq):
                pre = []
                if i == 0:
                    pre.append("s_waitcnt lgkmcnt(0)")
                if i == 8:
                    pre.append("s_nop 1")
                mf.append((pre, m))
            for g in range(16):
                for o in sm1[g]: addf(g // 2, o if g % 2 == 0 else ("s_nop 0\n" + o if o == sm1[g][0] else o))
            for o in sm1[16]: addf(7, "s_nop 0\n" + o if o == sm1[16][0] else o)
            for o in check(1): addf(7, o)
        emit_slots(A, mf, fill)

    import re
    texts = []
    for kt in range(15):
        B = Asm(); s0 = site[0]; nt = len(tramps)
        body(B, kt)
        texts.append(B.L)
        if kt > 0:
            site[0] = s0; del tramps[nt:]
    def norm(L): return [re.sub(r"L_k1_(tr|ret)\d+", "L", l) for l in L]
    base = texts[0]
    for i, l in enumerate(base):
        if any(norm([t[i]]) != norm([l]) for t in texts):
            assert l.startswith("s_waitcnt vmcnt("), (l, [t[i] for t in texts])
            base[i] = "s_waitcnt vmcnt(%d)" % min(int(re.search(r"\((\d+)\)", t[i]).group(1)) for t in texts)
    A("L_k1_att:")
    A.L += base
    A(f"s_sub_u32 s{SCNT}, s{SCNT}, 1\ns_cmp_lg_u32 s{SCNT}, 0\ns_cbranch_scc1 L_k1_att")
    body(A, 15, last=True)
    stamp(A, 5, 1)
    A("v_bfe_u32 v11, v1, 4, 1\nv_lshlrev_b32 v11, 10, v11\nv_lshrrev_b32 v12, 5, v1\nv_lshl_add_u32 v11, v12, 8, v11\nv_and_b32 v12, 15, v1\nv_lshl_add_u32 v11, v12, 4, v11")
    A(f"s_lshl_b32 s54, s33, 19\ns_lshl_b32 s55, s30, 14\ns_add_u32 s54, s54, s55\ns_add_u32 s54, s54, {WS_O}")
    for u in range(2):
        A(f"v_mov_b32 v{TMP}, v{LS[u]}\ns_nop 1")
        A(f"v_permlane32_swap_b32 v{LS[u]}, v{TMP}\ns_nop 1")
        A(f"v_add_f32 v{LS[u]}, v{LS[u]}, v{TMP}")
        A(f"v_rcp_f32 v{168+2*u}, v{LS[u]}\ns_nop 0\nv_mov_b32 v{169+2*u}, v{168+2*u}")
    A("s_nop 7")
    k = 0
    for u in range(2):
        for dt in range(4):
            A(f"s_add_u32 s55, s54, {dt*4096}")
            t = 16 + (k % 2) * 16
            d = 48 + (k % 2) * 8
            k += 1
            for r in range(16):
                A(f"v_accvgpr_read_b32 v{t+r}, a{O+(u*4+dt)*16+r}")
            for r in range(0, 16, 2):
                A(f"v_pk_mul_f32 v[{t+r}:{t+r+1}], v[{t+r}:{t+r+1}], v[{168+2*u}:{169+2*u}]")
            for r in range(0, 16, 2):
                A(f"v_cvt_pk_bf16_f32 v{d+r//2}, v{t+r}, v{t+r+1}")
            for c in range(2):
                A(f"buffer_store_dwordx4 v[{d+4*c}:{d+4*c+3}], v11, s[16:19], s55 offen offset:{u*2048+c*512}")
    if STAMP:
        A("s_waitcnt vmcnt(0)")
    stamp(A, 6, 1)
    A("L_k1_end:\ns_endpgm")
    for n, u in tramps:
        A(f"L_k1_tr{n}:\ns_call_b64 s[60:61], L_k1_rare{u}\ns_branch L_k1_ret{n}")
    for u in range(2):
        s = S[u]
        A(f"L_k1_rare{u}:")
        A("s_nop 15\ns_nop 15")
        A(f"v_max3_f32 v{TMP}, v{s}, v{s+1}, v{s+2}")
        for r in range(3, 15, 2):
            A(f"v_max3_f32 v{TMP}, v{TMP}, v{s+r}, v{s+r+1}")
        A(f"v_max3_f32 v{TMP}, v{TMP}, v{s+15}, 0")
        A(f"v_mov_b32 v{E}, v{TMP}\ns_nop 1")
        A(f"v_permlane32_swap_b32 v{TMP}, v{E}\ns_nop 1")
        A(f"v_max_f32 v{TMP}, v{TMP}, v{E}")
        A(f"v_exp_f32 v{TS+1}, -v{TMP}\ns_nop 0")
        A(f"v_mul_f32 v{LS[u]}, v{LS[u]}, v{TS+1}")
        for r in range(64):
            a = O + u * 64 + r
            A(f"v_accvgpr_read_b32 v{E}, a{a}\ns_nop 0\nv_mul_f32 v{E}, v{E}, v{TS+1}\ns_nop 0\nv_accvgpr_write_b32 a{a}, v{E}")
        for r in range(16):
            A(f"v_sub_f32 v{C[u]+r}, v{C[u]+r}, v{TMP}")
            A(f"v_sub_f32 v{s+r}, v{s+r}, v{TMP}")
        for g in softmax_ops(u):
            for o in g: A(o)
            A("s_nop 0")
        A("s_nop 3")
        A("s_setpc_b64 s[60:61]")

K2_SLOT = 16896
K2_LDS = 8 * K2_SLOT
def gen_k2(A):
    global STAMP_V, STAMP_SRD, STAMP_OFF
    kernel_head(A, "k2_kernel")
    A("s_cmp_ge_u32 s2, 256\ns_cbranch_scc1 L_k2_end")
    A("s_load_dwordx2 s[4:5], s[0:1], 32")
    A("s_load_dwordx4 s[40:43], s[0:1], 64")
    A("s_load_dwordx2 s[6:7], s[0:1], 96")
    A("s_load_dwordx2 s[44:45], s[0:1], 0")
    A("s_load_dwordx2 s[46:47], s[0:1], 80")
    A("s_and_b32 s30, s2, 7\ns_lshr_b32 s31, s2, 3")
    A("s_lshr_b32 s32, s30, 2")
    A("s_and_b32 s30, s30, 3\ns_lshl_b32 s30, s30, 2\ns_lshr_b32 s33, s31, 3\ns_add_u32 s33, s33, s30")
    A("s_and_b32 s34, s31, 7")
    A("v_and_b32 v1, 63, v0")
    A("v_lshrrev_b32 v2, 6, v0\ns_nop 0\nv_readfirstlane_b32 s3, v2")
    A("s_lshr_b32 s35, s3, 1\ns_and_b32 s36, s3, 1")
    A("s_cmp_eq_u32 s32, 0\ns_cselect_b32 s37, 64, 56")
    A("v_bfe_u32 v2, v1, 4, 1\nv_lshlrev_b32 v2, 4, v2\nv_lshrrev_b32 v3, 5, v1\nv_lshl_add_u32 v2, v3, 3, v2")
    A("s_lshl_b32 s38, s36, 2\nv_add_u32 v2, s38, v2")
    A("v_lshlrev_b32 v4, 11, v2\nv_and_b32 v3, 15, v1\nv_lshl_add_u32 v4, v3, 4, v4")
    A("s_lshl_b32 s38, s34, 8\nv_add_u32 v4, s38, v4")
    for b in range(1, 4):
        A(f"v_add_u32 v{4+b}, {b*(2048-1056)}, v4")
    A("v_lshlrev_b32 v8, 4, v1")
    A("v_bfe_u32 v9, v1, 2, 3")
    A("s_movk_i32 s38, 1056\nv_mul_lo_u32 v9, v9, s38")
    A("v_lshrrev_b32 v10, 5, v1\nv_lshl_add_u32 v9, v10, 9, v9")
    A("v_and_b32 v10, 3, v1\nv_lshl_add_u32 v9, v10, 3, v9")
    A("s_mul_i32 s38, s35, 8448\nv_add_u32 v9, s38, v9")
    A(f"v_add_u32 v10, {4*K2_SLOT}, v9")
    VW = (4, 5, 6, 7); VX = 8; VTR = (9, 10)
    A("s_waitcnt lgkmcnt(0)")
    A("s_cmp_eq_u32 s32, 0")
    A("s_cselect_b32 s8, s4, s40\ns_cselect_b32 s9, s5, s41")
    A(f"s_cselect_b32 s10, {4096*1024*2:#x}, {3584*1024*2:#x}" if False else f"s_mov_b32 s10, {4096*1024*2:#x}\ns_cselect_b32 s10, s10, {3584*1024*2:#x}")
    A("s_mov_b32 s11, 0x20000")
    srd(A, 16, 6, 7, WS_SIZE)
    srd(A, 20, 42, 43, 1024 * 2)
    srd(A, 48, 44, 45, 2048 * 1024 * 2)
    srd(A, 52, 46, 47, 2048 * 1024 * 2)
    SX, SW, SM0, SCNT = 24, 25, 28, 29
    A(f"s_mul_i32 s38, s35, s37\ns_lshl_b32 s{SW}, s38, 16")
    A("s_lshl_b32 s39, s33, 1\ns_add_u32 s39, s39, s36")
    A("s_mul_i32 s56, s39, s37\ns_lshl_b32 s56, s56, 1\ns_add_u32 s56, s56, s38\ns_lshl_b32 s56, s56, 12")
    A(f"s_cmp_eq_u32 s32, 0\ns_mov_b32 s57, {WS_O}\ns_cselect_b32 s57, s57, {WS_H}\ns_add_u32 s{SX}, s56, s57")
    A(f"s_mul_i32 s{SM0}, s3, 4224")
    STAMP_V, STAMP_SRD, STAMP_OFF = 15, 16, 62
    if STAMP:
        A(f"s_lshl_b32 s62, s2, 2\ns_add_u32 s62, s62, s3\ns_lshl_b32 s62, s62, 6\ns_add_u32 s62, s62, {WS_STAMP + 65536}")
    stamp(A, 0, 2)
    ACC = 16
    def acc(T, tt): return ACC + (T * 4 + tt) * 4
    XR = 0; WR = 128; NW = 8; WD = 4
    vm = VMQ()
    NKS = 24
    def x_load(d, tt):
        def f():
            vm.issue(("x", d))
            s = f"buffer_load_dwordx4 {ar(XR + (d % 8) * 16 + tt * 4, 4)}, v{VX}, s[16:19], s{SX} offen offset:{tt*1024}"
            if tt == 3:
                s += f"\ns_add_u32 s{SX}, s{SX}, 4096"
            return s
        return f
    def dma(d, i):
        def f():
            vm.issue(("d", d))
            s = f"buffer_load_dwordx4 v{VW[i]}, s[8:11], s{SW} offen offset:{i*1056} lds"
            if i == 3:
                s += f"\ns_add_u32 s{SW}, s{SW}, 65536"
            return s
        return f
    def set_m0(d):
        return f"s_add_u32 m0, s{SM0}, {(d % 8) * K2_SLOT}"
    def w_read(n, j):
        ks, T = divmod(n, 8)
        slot = ks % 8
        off = (slot % 4) * K2_SLOT + j * 256 + T * 32
        return f"ds_read_b64_tr_b16 {ar(WR + (n % NW) * 4 + 2 * j, 2)}, v{VTR[slot // 4]} offset:{off}"
    for t in range(-LA, 0):
        A(set_m0(t + LA))
        for i in range(4):
            A(x_load(t + TL, i)())
            A(dma(t + LA, i)())
    for r in range(ACC, ACC + 128):
        A(f"v_mov_b32 v{r}, 0")
    A(f"s_waitcnt vmcnt({vm.need(lambda t: t[0] == 'd' and t[1] <= 1)})")
    A("s_barrier")
    for n in range(WD):
        A(w_read(n, 0)); A(w_read(n, 1))
    stamp(A, 1, 2)
    def kstep(A, t):
        mf = []; fill = {}
        def addf(g, s):
            fill.setdefault(g, []).append(s)
        for T in range(8):
            n = t * 8 + T
            for tt in range(4):
                pre = []
                if tt == 0:
                    out = 2 * min(WD - 1, NKS * 8 - 1 - n)
                    if T == 0:
                        pre.append(lambda t=t, out=out: f"s_waitcnt vmcnt({vm.need(lambda x: x[0] == 'x' and x[1] == t)}) lgkmcnt({out})")
                    else:
                        pre.append(f"s_waitcnt lgkmcnt({out})")
                a = acc(T, tt)
                mf.append((pre, f"v_mfma_f32_16x16x32_bf16 v[{a}:{a+3}], {ar(WR + (n % NW) * 4, 4)}, {ar(XR + (t % 8) * 16 + tt * 4, 4)}, v[{a}:{a+3}]"))
            g0 = T * 4
            if n + WD < NKS * 8:
                addf(g0 + 0, w_read(n + WD, 0))
                addf(g0 + 1, w_read(n + WD, 1))
        ops = []
        if t + LA < NKS:
            for i in range(4):
                ops.append(x_load(t + TL, i))
                ops.append(dma(t + LA, i))
            addf(3, set_m0(t + LA))
        for k, op in enumerate(ops):
            addf(k * 4 + 2, op)
        if t % 2 == 1 and t + 1 < NKS:
            g0 = (8 - WD - 1) * 4
            addf(g0 + 3, lambda t=t: f"s_waitcnt vmcnt({vm.need(lambda x: x[0] == 'd' and x[1] <= t + 2)})")
            addf(g0 + 3, "s_barrier")
        emit_slots(A, mf, fill)
    bodies = []
    for it in range(3):
        B = Asm()
        for t in range(it * 8, it * 8 + 8):
            kstep(B, t)
        bodies.append(B.L)
    assert bodies[0] == bodies[1]
    A(f"s_lshr_b32 s{SCNT}, s37, 3\ns_sub_u32 s{SCNT}, s{SCNT}, 1")
    A("L_k2_g:")
    A.L += bodies[0]
    A(f"s_sub_u32 s{SCNT}, s{SCNT}, 1\ns_cmp_lg_u32 s{SCNT}, 0\ns_cbranch_scc1 L_k2_g")
    A.L += bodies[2]
    stamp(A, 2, 2)
    A("s_barrier")
    A("s_lshl_b32 s38, s3, 14\nv_add_u32 v11, s38, v8")
    A("s_xor_b32 s38, s3, 2\ns_lshl_b32 s38, s38, 14\nv_add_u32 v12, s38, v8")
    A("s_nop 4")
    A("s_cmp_eq_u32 s35, 0\ns_cbranch_scc1 L_k2_red0")
    for i in range(16):
        A(f"ds_write_b128 v11, v[{ACC+4*i}:{ACC+4*i+3}] offset:{i*1024}")
    A("s_waitcnt lgkmcnt(0)")
    for i in range(64):
        A(f"v_mov_b32 v{ACC+i}, v{ACC+64+i}")
    A("s_branch L_k2_red1")
    A("L_k2_red0:")
    for i in range(16):
        A(f"ds_write_b128 v11, v[{ACC+64+4*i}:{ACC+64+4*i+3}] offset:{i*1024}")
    A("s_waitcnt lgkmcnt(0)")
    A("L_k2_red1:")
    A("s_barrier")
    for i in range(16):
        A(f"ds_read_b128 v[{ACC+64+4*i}:{ACC+64+4*i+3}], v12 offset:{i*1024}")
    A("s_lshl_b32 s38, s33, 3\ns_add_u32 s38, s38, s34")
    A(f"s_lshl_b32 s56, s38, 7\ns_add_u32 s56, s56, {WS_FLAG}")
    A(f"s_lshl_b32 s38, s38, 2\ns_add_u32 s38, s38, s3\ns_lshl_b32 s38, s38, 13\ns_add_u32 s57, s38, {WS_G}")
    A("s_add_u32 s58, s57, 4096")
    A("s_cmp_eq_u32 s32, 0\ns_cbranch_scc1 L_k2_s")
    A("v_lshrrev_b32 v11, 4, v1\nv_lshlrev_b32 v11, 3, v11")
    A("s_lshl_b32 s38, s34, 8\ns_lshl_b32 s39, s35, 7\ns_add_u32 s38, s38, s39")
    for T in range(4):
        A(f"buffer_load_dwordx2 v[{160+2*T}:{161+2*T}], v11, s[20:23], s38 offen offset:{T*32}")
    A("s_waitcnt vmcnt(0)")
    for T in range(4):
        d = 144 + 4 * T; s = 160 + 2 * T
        A(f"v_lshlrev_b32 v{d}, 16, v{s}\nv_and_b32 v{d+1}, 0xffff0000, v{s}")
        A(f"v_lshlrev_b32 v{d+2}, 16, v{s+1}\nv_and_b32 v{d+3}, 0xffff0000, v{s+1}")
    A("s_waitcnt lgkmcnt(0)")
    nl2e = -math.log2(math.e)
    A(f"s_mov_b32 s60, {f2u(nl2e):#x}\ns_mov_b32 s61, {f2u(nl2e):#x}")
    for i in range(16):
        a = ACC + 4 * i; b = ACC + 64 + 4 * i; bi = 144 + 4 * (i // 4); t = 168
        for h in (0, 2):
            A(f"v_pk_add_f32 v[{a+h}:{a+h+1}], v[{a+h}:{a+h+1}], v[{b+h}:{b+h+1}]")
        for h in (0, 2):
            A(f"v_pk_add_f32 v[{a+h}:{a+h+1}], v[{a+h}:{a+h+1}], v[{bi+h}:{bi+h+1}]")
        for h in (0, 2):
            A(f"v_pk_mul_f32 v[{t+h}:{t+h+1}], v[{a+h}:{a+h+1}], s[60:61]")
        for r in range(4):
            A(f"v_exp_f32 v{t+r}, v{t+r}")
        A("s_nop 0")
        for h in (0, 2):
            A(f"v_pk_add_f32 v[{t+h}:{t+h+1}], v[{t+h}:{t+h+1}], 1.0 op_sel_hi:[1,0]")
        for r in range(4):
            A(f"v_rcp_f32 v{t+r}, v{t+r}")
        A("s_nop 0")
        for h in (0, 2):
            A(f"v_pk_mul_f32 v[{t+h}:{t+h+1}], v[{t+h}:{t+h+1}], v[{a+h}:{a+h+1}]")
        d = 176 + 2 * i
        A(f"v_cvt_pk_bf16_f32 v{d}, v{t}, v{t+1}\nv_cvt_pk_bf16_f32 v{d+1}, v{t+2}, v{t+3}")
        if i & 1:
            k = i // 2
            A(f"buffer_store_dwordx4 v[{d-2}:{d+1}], v8, s[16:19], s{57 + k // 4} offen offset:{(k % 4)*1024} sc0 sc1")
    A("s_waitcnt vmcnt(0)")
    A("s_barrier")
    A("s_cmp_lg_u32 s3, 0\ns_cbranch_scc1 L_k2_end")
    A("v_mov_b32 v11, 1\nv_mov_b32 v12, 0")
    A("s_mov_b64 exec, 1")
    A("buffer_store_dword v11, v12, s[16:19], s56 offen sc0 sc1")
    A("s_endpgm")
    A("L_k2_s:")
    A("v_and_b32 v11, 15, v1\nv_lshlrev_b32 v11, 11, v11")
    A("v_bfe_u32 v12, v1, 4, 1\nv_lshl_add_u32 v11, v12, 5, v11")
    A("v_lshrrev_b32 v12, 5, v1\nv_lshl_add_u32 v11, v12, 4, v11")
    A("s_lshl_b32 s38, s39, 17\ns_lshl_b32 s59, s34, 8\ns_add_u32 s38, s38, s59\ns_lshl_b32 s59, s35, 7\ns_add_u32 s38, s38, s59")
    for tt in range(4):
        A(f"s_add_u32 s{64+tt}, s38, {tt*32768}")
    for tt in range(4):
        for pT in range(2):
            d = 208 + (pT * 4 + tt) * 4
            A(f"buffer_load_dwordx4 v[{d}:{d+3}], v11, s[48:51], s{64+tt} offen offset:{pT*64}")
    A("s_cmp_lg_u32 s3, 0\ns_cbranch_scc1 L_k2_polled")
    A("v_mov_b32 v12, 0\ns_mov_b32 s60, 0")
    A("L_k2_poll:")
    A("buffer_load_dword v13, v12, s[16:19], s56 offen sc0 sc1")
    A("s_waitcnt vmcnt(0)")
    A("v_readfirstlane_b32 s59, v13")
    A("s_cmp_eq_u32 s59, 1\ns_cbranch_scc1 L_k2_polled")
    A("s_add_u32 s60, s60, 1\ns_cmp_ge_u32 s60, 0x100000\ns_cbranch_scc1 L_k2_polled")
    A("s_sleep 2\ns_branch L_k2_poll")
    A("L_k2_polled:")
    A("s_barrier")
    for k in range(8):
        d = 176 + 4 * k
        A(f"buffer_load_dwordx4 v[{d}:{d+3}], v8, s[16:19], s{57 + k // 4} offen offset:{(k % 4)*1024} sc0 sc1")
    A("s_waitcnt lgkmcnt(0)")
    for i in range(16):
        a = ACC + 4 * i; b = ACC + 64 + 4 * i
        for h in (0, 2):
            A(f"v_pk_add_f32 v[{a+h}:{a+h+1}], v[{a+h}:{a+h+1}], v[{b+h}:{b+h+1}]")
    A("s_waitcnt vmcnt(0)")
    for i in range(16):
        a = ACC + 4 * i; g = 176 + 2 * i; t = 168
        A(f"v_lshlrev_b32 v{t}, 16, v{g}\nv_and_b32 v{t+1}, 0xffff0000, v{g}")
        A(f"v_lshlrev_b32 v{t+2}, 16, v{g+1}\nv_and_b32 v{t+3}, 0xffff0000, v{g+1}")
        for h in (0, 2):
            A(f"v_pk_mul_f32 v[{a+h}:{a+h+1}], v[{a+h}:{a+h+1}], v[{t+h}:{t+h+1}]")
        A(f"v_cvt_pk_bf16_f32 v{a}, v{a}, v{a+1}\nv_cvt_pk_bf16_f32 v{a+1}, v{a+2}, v{a+3}")
    A("s_nop 1")
    for pT in range(2):
        for tt in range(4):
            a0 = ACC + 4 * ((2 * pT) * 4 + tt); a1 = ACC + 4 * ((2 * pT + 1) * 4 + tt)
            A(f"v_permlane16_swap_b32 v{a0}, v{a1}\nv_permlane16_swap_b32 v{a0+1}, v{a1+1}")
    A("s_nop 1")
    for pT in range(2):
        for tt in range(4):
            a0 = ACC + 4 * ((2 * pT) * 4 + tt); a1 = ACC + 4 * ((2 * pT + 1) * 4 + tt)
            xv = 208 + (pT * 4 + tt) * 4
            src = [a0, a0 + 1, a1, a1 + 1]
            for k in range(4):
                t = 168; u = 170
                A(f"v_lshlrev_b32 v{t}, 16, v{src[k]}\nv_and_b32 v{t+1}, 0xffff0000, v{src[k]}")
                A(f"v_lshlrev_b32 v{u}, 16, v{xv+k}\nv_and_b32 v{u+1}, 0xffff0000, v{xv+k}")
                A(f"v_pk_add_f32 v[{t}:{t+1}], v[{t}:{t+1}], v[{u}:{u+1}]")
                A(f"v_cvt_pk_bf16_f32 v{xv+k}, v{t}, v{t+1}")
            A(f"buffer_store_dwordx4 v[{xv}:{xv+3}], v11, s[52:55], s{64+tt} offen offset:{pT*64}")
    if STAMP:
        A("s_waitcnt vmcnt(0)")
    stamp(A, 3, 2)
    A("L_k2_end:\ns_endpgm")

def main():
    global STAMP
    STAMP = "--stamp" in sys.argv
    ref = open(f"cdna_kernels/{NAME}.s.ref").read().split("\n")
    head = [l for l in ref if l.startswith(";") and "@launch" not in l and "Override launch" not in l and "grid=ceil" not in l]
    A = Asm()
    gen_k0(A); gen_k1(A); gen_k2(A)
    out = "\n".join(head) + "\n"
    out += "; @launch kernel=k0_kernel grid=(256,1,1) block=(256,1,1) lds=0\n"
    out += f"; @launch kernel=k1_kernel grid=(256,1,1) block=(256,1,1) lds={K1_LDS}\n"
    out += f"; @launch kernel=k2_kernel grid=(256,1,1) block=(256,1,1) lds={K2_LDS}\n"
    out += '.amdgcn_target "amdgcn-amd-amdhsa--gfx950"\n.text\n'
    out += A.text() + "\n"
    out += '.section .rodata,"a"\n'
    for n, v, a in (("k0_kernel", 80, 80), ("k1_kernel", 512, 256), ("k2_kernel", 256 + 160, 256)):
        out += ".p2align 6\n" + kernel_desc(n, v, a) + "\n"
    sys.stdout.write(out)

main()
```

```python
import sys, struct, math

NAME = "recurrent_scan__sliding_block_cached__dense_activation_gelu__prompt"

WS_XN = 0
WS_KV = 4 << 20
KV_GRP = 17 * 16384
WS_O = 8 << 20
WS_H = 24 << 20
WS_G = 40 << 20
WS_FLAG = 44 << 20
WS_STAMP = 45 << 20
WS_SIZE = 48 << 20

def opt(name, default=None):
    for a in sys.argv[1:]:
        if a.startswith("--" + name + "="):
            return a.split("=", 1)[1]
    return default

def f2u(f):
    return struct.unpack("<I", struct.pack("<f", f))[0]

class Asm:
    def __init__(self):
        self.L = []
    def __call__(self, s):
        for line in s.split("\n"):
            line = line.strip()
            if line:
                self.L.append(line)
    def nop(self, n):
        while n > 0:
            k = min(n, 16)
            self.L.append(f"s_nop {k-1}")
            n -= k
    def text(self):
        out = []
        for l in self.L:
            if l.endswith(":") or l.startswith("."):
                out.append(l)
            else:
                out.append("    " + l)
        return "\n".join(out)

def vr(b, n=1, k="v"):
    return f"{k}{b}" if n == 1 else f"{k}[{b}:{b+n-1}]"
def ar(b, n=1):
    return vr(b, n, "a")
def sr(b, n=1):
    return vr(b, n, "s")

def srd(A, d, lo, hi, size):
    A(f"s_mov_b32 s{d}, s{lo}\ns_mov_b32 s{d+1}, s{hi}\ns_mov_b32 s{d+2}, {size:#x}\ns_mov_b32 s{d+3}, 0x20000")

def kernel_head(A, name):
    A(f".globl {name}\n.p2align 8\n.type {name},@function\n{name}:")

def kernel_desc(name, vgpr, accum, sgpr=102):
    return f""".amdhsa_kernel {name}
  .amdhsa_next_free_vgpr {vgpr}
  .amdhsa_next_free_sgpr {sgpr}
  .amdhsa_accum_offset {accum}
  .amdhsa_group_segment_fixed_size 0
  .amdhsa_kernarg_size 104
  .amdhsa_user_sgpr_count 2
  .amdhsa_user_sgpr_kernarg_segment_ptr 1
  .amdhsa_system_sgpr_workgroup_id_x 1
.end_amdhsa_kernel"""

class VMQ:
    def __init__(self):
        self.q = []
    def issue(self, tag):
        self.q.append(tag)
    def need(self, pred):
        for i in range(len(self.q) - 1, -1, -1):
            if pred(self.q[i]):
                n = len(self.q) - 1 - i
                assert n <= 63, n
                return n
        return None

STAMP = False
def xfilter(L):
    out = []
    for l in L:
        if "--nolds" in sys.argv and l.startswith("ds_read"): continue
        if "--nox" in sys.argv and l.startswith("buffer_load") and not l.endswith("lds"): continue
        if "--nodma" in sys.argv and l.startswith("buffer_load") and l.endswith("lds") and "s[48:51]" not in l: continue
        if "--nomfma" in sys.argv and l.startswith("v_mfma"): continue
        out.append(l)
    return out
def stamp(A, idx, kid, sbase=90):
    if not STAMP:
        return
    A(f"s_memtime s[{sbase}:{sbase+1}]\ns_memrealtime s[{sbase+2}:{sbase+3}]\ns_waitcnt lgkmcnt(0)")
    A(f"v_mov_b32 v{STAMP_V}, s{sbase}")
    A(f"buffer_store_dword v{STAMP_V}, off, s[{STAMP_SRD}:{STAMP_SRD+3}], s{STAMP_OFF} offset:{idx*4}")
    A(f"s_nop 1\nv_mov_b32 v{STAMP_V}, s{sbase+2}")
    A(f"buffer_store_dword v{STAMP_V}, off, s[{STAMP_SRD}:{STAMP_SRD+3}], s{STAMP_OFF} offset:{32+idx*4}")

def gen_k0(A):
    kernel_head(A, "k0_kernel")
    A("s_cmp_ge_u32 s2, 256\ns_cbranch_scc1 L_k0_end")
    A("s_load_dwordx2 s[4:5], s[0:1], 0")
    A("s_load_dwordx4 s[24:27], s[0:1], 8")
    A("s_load_dwordx2 s[6:7], s[0:1], 96")
    A("s_load_dwordx2 s[44:45], s[0:1], 24")
    A("s_load_dwordx2 s[46:47], s[0:1], 48")
    A("v_and_b32 v1, 63, v0")
    A("v_lshrrev_b32 v2, 6, v0")
    A("v_lshrrev_b32 v3, 5, v0")
    A("v_readfirstlane_b32 s3, v2")
    A("s_lshl_b32 s28, s2, 3")
    A("v_add_u32 v3, s28, v3")
    A("v_and_b32 v4, 31, v0")
    A("v_lshlrev_b32 v5, 11, v3")
    A("v_lshl_add_u32 v5, v4, 4, v5")
    A("s_waitcnt lgkmcnt(0)")
    srd(A, 8, 4, 5, 2048 * 1024 * 2)
    srd(A, 12, 6, 7, WS_SIZE)
    global STAMP_V, STAMP_SRD, STAMP_OFF
    STAMP_V, STAMP_SRD, STAMP_OFF = 79, 12, 53
    if STAMP:
        A(f"s_lshl_b32 s53, s2, 2\ns_add_u32 s53, s53, s3\ns_lshl_b32 s53, s53, 6\ns_add_u32 s53, s53, {WS_STAMP + 131072}")
    stamp(A, 0, 0)
    for i in range(4):
        A(f"buffer_load_dwordx4 v[{8+4*i}:{11+4*i}], v5, s[8:11], 0 offen offset:{512*i}" + (" nt" if opt("xnt","1")=="1" else ""))
    if opt("pf0", "off") != "off":
        pol = {"d": "", "nt": " nt"}[opt("pf0", "off")]
        srd(A, 40, 44, 45, 1024 * 4096 * 2)
        srd(A, 60, 46, 47, 1024 * 3584 * 2)
        A("s_lshr_b32 s48, s2, 3\ns_lshl_b32 s48, s48, 2\ns_add_u32 s48, s48, s3\ns_and_b32 s49, s2, 7")
        A("s_lshl_b32 s50, s48, 16\ns_lshl_b32 s51, s49, 10\ns_add_u32 s50, s50, s51")
        A(f"s_mul_i32 s51, s48, {8*7168}\ns_mul_i32 s52, s49, 896\ns_add_u32 s51, s51, s52")
        A("v_lshrrev_b32 v70, 3, v1\nv_and_b32 v71, 7, v1\nv_lshlrev_b32 v72, 13, v70\nv_lshl_add_u32 v72, v71, 7, v72")
        A("s_movk_i32 s52, 7168\nv_mul_lo_u32 v73, v70, s52\nv_min_u32 v71, 6, v71\nv_lshl_add_u32 v73, v71, 7, v73")
    A("s_and_b32 s29, s3, 1\ns_lshl_b32 s30, s2, 1\ns_add_u32 s30, s30, s29")
    A("s_lshr_b32 s31, s30, 7")
    A("s_lshr_b32 s32, s30, 3\ns_and_b32 s32, s32, 15")
    A("s_and_b32 s33, s30, 7")
    A("s_lshl_b32 s34, s31, 19\ns_lshl_b32 s35, s32, 13\ns_add_u32 s34, s34, s35\ns_add_u32 s34, s34, %d" % (1536 * 256))
    A(f"s_mul_i32 s36, s31, {KV_GRP}\ns_lshl_b32 s35, s32, 14\ns_add_u32 s36, s36, s35\ns_lshl_b32 s35, s33, 10\ns_add_u32 s36, s36, s35\ns_add_u32 s36, s36, {WS_KV}")
    A("v_lshrrev_b32 v6, 5, v1")
    A("s_cmp_ge_u32 s3, 2\ns_cbranch_scc1 L_k0_v")
    srd(A, 16, 24, 25, 4 * 2048 * 128 * 2)
    A("v_lshlrev_b32 v7, 8, v4")
    A("v_lshl_add_u32 v7, v6, 4, v7")
    A("s_lshl_b32 s35, s33, 5\ns_add_u32 s34, s34, s35")
    A("buffer_load_dwordx4 v[60:63], v7, s[16:19], s34 offen")
    A("s_branch L_k0_kvdone")
    A("L_k0_v:")
    srd(A, 16, 26, 27, 4 * 2048 * 128 * 2)
    A("v_and_b32 v7, 7, v4")
    A("v_bfe_u32 v56, v4, 3, 1\nv_lshl_or_b32 v7, v56, 4, v7")
    A("v_bfe_u32 v56, v4, 4, 1\nv_lshl_or_b32 v7, v56, 3, v7")
    A("v_lshlrev_b32 v7, 1, v7")
    A("v_lshl_add_u32 v7, v6, 10, v7")
    A("s_lshr_b32 s35, s33, 1\ns_lshl_b32 s35, s35, 6\ns_add_u32 s34, s34, s35")
    A("s_and_b32 s35, s33, 1\ns_lshl_b32 s35, s35, 12\ns_add_u32 s34, s34, s35")
    A(f"s_add_u32 s36, s36, {16384 + 8192}")
    for e in range(8):
        off = (8 * (e >> 2) + (e & 3)) * 256
        A(f"buffer_load_ushort v{(64 if e & 1 else 60) + (e >> 1)}, v7, s[16:19], s34 offen offset:{off}")
    A("L_k0_kvdone:")
    A("v_mov_b32 v57, 0")
    A("s_cmp_ge_u32 s2, 128\ns_cbranch_scc1 L_k0_noflag")
    A("s_cmp_lg_u32 s3, 0\ns_cbranch_scc1 L_k0_noflag")
    A(f"s_lshl_b32 s35, s2, 7\ns_add_u32 s35, s35, {WS_FLAG}")
    A("v_lshlrev_b32 v58, 2, v4")
    A("buffer_store_dword v57, v58, s[12:15], s35 offen")
    A("L_k0_noflag:")
    A("v_lshrrev_b32 v56, 6, v3\nv_lshlrev_b32 v56, 17, v56")
    A("v_lshrrev_b32 v57, 2, v4\nv_lshl_add_u32 v56, v57, 12, v56")
    A("v_bfe_u32 v57, v3, 4, 2\nv_lshl_add_u32 v56, v57, 10, v56")
    A("v_and_b32 v57, 3, v4\nv_lshl_add_u32 v56, v57, 8, v56")
    A("v_and_b32 v57, 15, v3\nv_lshl_add_u32 v56, v57, 4, v56")
    A("v_lshlrev_b32 v59, 4, v1")
    if opt("pf0", "off") != "off":
        A(f"buffer_load_dword v80, v72, s[40:43], s50 offen{pol}")
        A(f"buffer_load_dword v81, v73, s[60:63], s51 offen{pol}")
        A("s_waitcnt vmcnt(2)")
    else:
        A("s_waitcnt vmcnt(0)")
    A("s_cmp_lt_u32 s3, 2\ns_cbranch_scc1 L_k0_nopack")
    for e in range(4):
        A(f"v_lshl_or_b32 v{60+e}, v{64+e}, 16, v{60+e}")
    A("L_k0_nopack:")
    A("buffer_store_dwordx4 v[60:63], v59, s[12:15], s36 offen")
    for i in range(16):
        A(f"v_lshlrev_b32 v{24+2*i}, 16, v{8+i}")
        A(f"v_and_b32 v{25+2*i}, 0xffff0000, v{8+i}")
    def reduce32(acc, tmp):
        for r in (8, 4, 2, 1):
            A("s_nop 1")
            A(f"v_add_f32_dpp v{acc}, v{acc}, v{acc} row_ror:{r} row_mask:0xf bank_mask:0xf")
        A(f"v_mov_b32 v{tmp}, v{acc}\ns_nop 1")
        A(f"v_permlane16_swap_b32 v{acc}, v{tmp}\ns_nop 1")
        A(f"v_add_f32 v{acc}, v{acc}, v{tmp}")
    for c in range(4):
        A(f"v_add_f32 v{8+c}, v{24+c}, v{28+c}")
    for i in range(8, 32):
        A(f"v_add_f32 v{8+(i&3)}, v{8+(i&3)}, v{24+i}")
    A("v_add_f32 v8, v8, v9\nv_add_f32 v10, v10, v11\nv_add_f32 v8, v8, v10")
    reduce32(8, 9)
    A(f"v_mul_f32 v8, {f2u(1.0/1024):#x}, v8")
    for i in range(32):
        A(f"v_sub_f32 v{12+(i&3)}, v{24+i}, v8")
        if i < 4:
            A(f"v_mul_f32 v{16+(i&3)}, v{12+(i&3)}, v{12+(i&3)}")
        else:
            A(f"v_fmac_f32 v{16+(i&3)}, v{12+(i&3)}, v{12+(i&3)}")
    A("v_add_f32 v16, v16, v17\nv_add_f32 v18, v18, v19\nv_add_f32 v16, v16, v18")
    reduce32(16, 17)
    A(f"v_mul_f32 v16, {f2u(1.0/1024):#x}, v16")
    def rbf(r):
        A(f"v_cvt_pk_bf16_f32 v{r}, v{r}, v{r}\nv_lshlrev_b32 v{r}, 16, v{r}")
    rbf(8)
    rbf(16)
    A(f"v_add_f32 v16, {f2u(1e-5):#x}, v16")
    rbf(16)
    A("v_sqrt_f32 v16, v16\ns_nop 0")
    rbf(16)
    A("v_rcp_f32 v16, v16\ns_nop 0")
    for i in range(16):
        a, b = 24 + 2 * i, 25 + 2 * i
        A(f"v_sub_f32 v{a}, v{a}, v8\nv_sub_f32 v{b}, v{b}, v8")
        A(f"v_cvt_pk_bf16_f32 v{b}, v{a}, v{b}")
        A(f"v_lshlrev_b32 v{a}, 16, v{b}\nv_and_b32 v{b}, 0xffff0000, v{b}")
        A(f"v_mul_f32 v{a}, v{a}, v16\nv_mul_f32 v{b}, v{b}, v16")
        A(f"v_cvt_pk_bf16_f32 v{64+i}, v{a}, v{b}")
    for i in range(4):
        A(f"s_mov_b32 s35, {WS_XN + i*32768}")
        A(f"buffer_store_dwordx4 v[{64+4*i}:{67+4*i}], v56, s[12:15], s35 offen")
    if STAMP:
        A("s_waitcnt vmcnt(0)")
    stamp(A, 1, 0)
    A("L_k0_end:\ns_endpgm")

def emit_slots(A, mfmas, fillers):
    for i, (pre, m) in enumerate(mfmas):
        for p in pre:
            A(p() if callable(p) else p)
        A(m)
        for f in fillers.get(i, []):
            A(f() if callable(f) else f)

K1_SLOT = 16640
K1_LDS = 8 * K1_SLOT
LA = 5
TL = 5
SC = math.log2(math.e) / math.sqrt(128.0)
THR = 2.0 ** 24

def gen_k1(A):
    global STAMP_V, STAMP_SRD, STAMP_OFF
    kernel_head(A, "k1_kernel")
    A("s_cmp_ge_u32 s2, 256\ns_cbranch_scc1 L_k1_end")
    A("s_load_dwordx2 s[4:5], s[0:1], 24")
    A("s_load_dwordx4 s[40:43], s[0:1], 48")
    A("s_load_dwordx2 s[6:7], s[0:1], 96")
    A("s_load_dwordx2 s[64:65], s[0:1], 32")
    A("s_load_dwordx2 s[68:69], s[0:1], 64")
    A("s_and_b32 s30, s2, 7\ns_lshr_b32 s31, s2, 3\ns_and_b32 s32, s31, 3\ns_lshl_b32 s30, s30, 2\ns_add_u32 s30, s30, s32")
    A("s_lshr_b32 s31, s31, 2")
    A("v_and_b32 v1, 63, v0")
    A("v_lshrrev_b32 v2, 6, v0\ns_nop 0\nv_readfirstlane_b32 s3, v2")
    A("s_lshl_b32 s33, s31, 2\ns_add_u32 s33, s33, s3")
    A("s_lshr_b32 s34, s30, 1\ns_and_b32 s35, s30, 1")
    A("s_mul_i32 s36, s34, 224\ns_mul_i32 s37, s35, 96\ns_add_u32 s37, s37, s36")
    A("s_lshl_b32 s38, s35, 4\ns_add_u32 s38, s38, s36\ns_add_u32 s38, s38, 192")
    A("v_lshrrev_b32 v2, 5, v1\nv_lshlrev_b32 v2, 4, v2")
    A("v_bfe_u32 v3, v1, 4, 1\nv_lshl_add_u32 v2, v3, 2, v2")
    A("s_lshr_b32 s39, s3, 1\ns_lshl_b32 s39, s39, 3\ns_and_b32 s44, s3, 1\ns_lshl_b32 s44, s44, 1\ns_add_u32 s39, s39, s44")
    A("v_add_u32 v2, s39, v2")
    A("v_and_b32 v3, 15, v1")
    A("v_lshlrev_b32 v4, 13, v2\nv_lshl_add_u32 v4, v3, 4, v4")
    A("s_lshl_b32 s44, s30, 8\ns_add_u32 s44, s44, 4096\nv_add_u32 v4, s44, v4")
    A(f"v_add_u32 v5, {8192 - 1056}, v4")
    A("s_movk_i32 s44, 7168\nv_mul_lo_u32 v6, v2, s44")
    A("v_lshl_add_u32 v6, v3, 4, v6")
    A("s_lshl_b32 s44, s37, 1\ns_lshl_b32 s45, s38, 1\ns_sub_u32 s45, s45, 192")
    A("v_mov_b32 v8, s44\nv_mov_b32 v9, s45\nv_cmp_gt_u32 vcc, 12, v3\ns_nop 1\nv_cndmask_b32 v8, v9, v8, vcc")
    A("v_mov_b32 v9, 0x80000000\nv_cmp_gt_u32 vcc, 14, v3\ns_nop 1\nv_cndmask_b32 v8, v9, v8, vcc")
    A(f"v_add_u32 v6, v6, v8\nv_add_u32 v6, {4096 - 2080}, v6")
    A(f"v_add_u32 v7, {7168 - 1056}, v6")
    A("v_lshlrev_b32 v8, 4, v1")
    A("v_bfe_u32 v9, v1, 3, 2")
    A("s_movk_i32 s44, 4160\nv_mul_lo_u32 v9, v9, s44")
    A("v_bfe_u32 v10, v1, 2, 1\ns_movk_i32 s44, 1056\nv_mul_lo_u32 v10, v10, s44\nv_add_u32 v9, v9, v10")
    A("v_lshrrev_b32 v10, 5, v1\nv_lshl_add_u32 v9, v10, 9, v9")
    A("v_and_b32 v10, 3, v1\nv_lshl_add_u32 v9, v10, 3, v9")
    A(f"v_add_u32 v10, {4 * K1_SLOT}, v9")
    A("v_lshrrev_b32 v11, 4, v1\nv_lshlrev_b32 v11, 3, v11")
    A("s_lshl_b32 s44, s38, 1\nv_add_u32 v12, s44, v11")
    A("s_lshl_b32 s44, s37, 1\nv_add_u32 v11, s44, v11")
    VWQ = (4, 5); VW1 = (6, 7); VX = 8; VTR = (9, 10)
    A("s_waitcnt lgkmcnt(0)")
    A("s_sub_u32 s4, s4, 4096\ns_subb_u32 s5, s5, 0")
    A("s_sub_u32 s40, s40, 4096\ns_subb_u32 s41, s41, 0")
    srd(A, 8, 4, 5, 1024 * 4096 * 2 + 4096)
    srd(A, 12, 40, 41, 1024 * 3584 * 2 + 4096)
    srd(A, 16, 6, 7, WS_SIZE)
    srd(A, 20, 42, 43, 3584 * 2)
    A(f"s_lshr_b32 s44, s30, 3\ns_mul_i32 s44, s44, {KV_GRP}\ns_add_u32 s44, s44, {WS_KV}")
    A("s_add_u32 s46, s6, s44\ns_addc_u32 s47, s7, 0")
    srd(A, 48, 46, 47, KV_GRP)
    SX, SWQ, SW1, SKV, SM0, SCNT = 24, 25, 26, 27, 28, 29
    A(f"s_lshl_b32 s{SX}, s33, 17")
    A(f"s_mov_b32 s{SWQ}, 0\ns_mov_b32 s{SW1}, 0")
    A(f"s_lshl_b32 s{SKV}, s3, 12")
    A(f"s_mul_i32 s{SM0}, s3, 4160")
    A("s_lshl_b32 s52, s3, 12")
    PF1 = opt("pf1", "d") != "off"
    WNT = " nt" if opt("wnt", "1") == "1" else ""
    if PF1:
        A(f"s_mov_b32 s66, {4096*1024*2:#x}\ns_mov_b32 s67, 0x20000\ns_mov_b32 s70, {3584*1024*2:#x}\ns_mov_b32 s71, 0x20000")
        A("s_lshl_b32 s72, s2, 2\ns_add_u32 s72, s72, s3\ns_lshl_b32 s72, s72, 13")
        A("v_lshlrev_b32 v13, 7, v1\nv_add_u32 v13, s72, v13")
        A("v_mov_b32 v14, 0x80000000\nv_cmp_gt_u32 vcc, 16, v1\ns_nop 1\nv_cndmask_b32 v13, v14, v13, vcc")
    def pf(which):
        def f():
            vm.issue(("p",))
            if which == 0:
                return "buffer_load_dword v14, v13, s[64:67], 0 offen"
            return "buffer_load_dword v14, v13, s[68:71], 0 offen\nv_add_u32 v13, 2048, v13"
        return f
    STAMP_V, STAMP_SRD, STAMP_OFF = 15, 16, 53
    if STAMP:
        A(f"s_lshl_b32 s53, s2, 2\ns_add_u32 s53, s53, s3\ns_lshl_b32 s53, s53, 6\ns_add_u32 s53, s53, {WS_STAMP}")
    stamp(A, 0, 1)

    ACCQ = 16; ACCH = 144
    def acc(T, tt):
        return (ACCQ + (T * 4 + tt) * 4) if T < 8 else (ACCH + ((T - 8) * 4 + tt) * 4)
    XR = 0
    WR = 128
    NW = 6; WD = 4
    vm = VMQ()

    def x_load(d, tt):
        def f():
            vm.issue(("x", d))
            s = f"buffer_load_dwordx4 {ar(XR + (d % 8) * 16 + tt * 4, 4)}, v{VX}, s[16:19], s{SX} offen offset:{tt*1024}"
            if tt == 3:
                s += f"\ns_add_u32 s{SX}, s{SX}, 4096"
            return s
        return f
    def dma(d, i):
        def f():
            vm.issue(("d", d))
            s = ""
            if d < 32:
                if i == 0:
                    s = f"buffer_load_dwordx4 v{VWQ[0]}, s[8:11], s{SWQ} offen{WNT} lds"
                elif i == 1:
                    s = f"buffer_load_dwordx4 v{VWQ[1]}, s[8:11], s{SWQ} offen offset:1056{WNT} lds\ns_add_u32 s{SWQ}, s{SWQ}, {32*8192}"
                elif i == 2:
                    s = f"buffer_load_dwordx4 v{VW1[0]}, s[12:15], s{SW1} offen offset:2080{WNT} lds"
                else:
                    s = f"buffer_load_dwordx4 v{VW1[1]}, s[12:15], s{SW1} offen offset:3136{WNT} lds\ns_add_u32 s{SW1}, s{SW1}, {32*7168}"
            else:
                s = f"buffer_load_dwordx4 v{VX}, s[48:51], s{SKV} offen offset:{i*1024} lds"
                if i == 3:
                    s += f"\ns_add_u32 s{SKV}, s{SKV}, 16384"
            return s
        return f
    def set_m0(d):
        return f"s_add_u32 m0, s{SM0 if d < 32 else 52}, {(d % 8) * K1_SLOT}"
    def w_read(n, j):
        ks, T = divmod(n, 15)
        slot = ks % 8
        part, Tl = (0, T) if T < 8 else (1, T - 8)
        off = (slot % 4) * K1_SLOT + part * 2080 + j * 256 + Tl * 32
        return f"ds_read_b64_tr_b16 {ar(WR + (n % NW) * 4 + 2 * j, 2)}, v{VTR[slot // 4]} offset:{off}"

    for T in range(7):
        vm.issue(("b", T))
        if T < 6:
            A(f"buffer_load_dwordx2 v[{acc(8+T,1)}:{acc(8+T,1)+1}], v11, s[20:23], 0 offen offset:{T*32}")
        else:
            A(f"buffer_load_dwordx2 v[{acc(8+T,1)}:{acc(8+T,1)+1}], v12, s[20:23], 0 offen")
    assert LA == TL
    for t in range(-LA, 0):
        A(set_m0(t + LA))
        for i in range(4):
            A(x_load(t + TL, i)())
            A(dma(t + LA, i)())
        if PF1 and t % 4 == 1:
            vm.issue(("p",)); A("buffer_load_dword v14, v13, s[64:67], 0 offen")
    for r in range(ACCQ, ACCQ + 128):
        A(f"v_mov_b32 v{r}, 0")
    A(f"s_waitcnt vmcnt({vm.need(lambda t: t[0] == 'b')})")
    for T in range(7):
        s = acc(8 + T, 1); d = acc(8 + T, 0)
        A(f"v_lshlrev_b32 v{d}, 16, v{s}\nv_and_b32 v{d+1}, 0xffff0000, v{s}")
        A(f"v_lshlrev_b32 v{d+2}, 16, v{s+1}\nv_and_b32 v{d+3}, 0xffff0000, v{s+1}")
        for tt in range(1, 4):
            for r in range(4):
                A(f"v_mov_b32 v{acc(8+T,tt)+r}, v{d+r}")
    A(f"s_waitcnt vmcnt({vm.need(lambda t: t[0] == 'd' and t[1] <= 1)})")
    A("s_barrier")
    for n in range(WD):
        A(w_read(n, 0)); A(w_read(n, 1))
    stamp(A, 1, 1)

    def kstep(A, t):
        mf = []; fill = {}
        def addf(g, s):
            fill.setdefault(g, []).append(s)
        for T in range(15):
            n = t * 15 + T
            for tt in range(4):
                pre = []
                if tt == 0:
                    out = 2 * min(WD - 1, 32 * 15 - 1 - n)
                    if T == 0:
                        pre.append(lambda t=t, out=out: f"s_waitcnt vmcnt({vm.need(lambda x: x[0] == 'x' and x[1] == t)}) lgkmcnt({out})")
                    else:
                        pre.append(f"s_waitcnt lgkmcnt({out})")
                a = acc(T, tt)
                mf.append((pre, f"v_mfma_f32_16x16x32_bf16 v[{a}:{a+3}], {ar(WR + (n % NW) * 4, 4)}, {ar(XR + (t % 8) * 16 + tt * 4, 4)}, v[{a}:{a+3}]"))
            g0 = T * 4
            if T == 15 - WD - 1 and t % 2 == 1:
                addf(g0 + 2, lambda t=t: f"s_waitcnt vmcnt({vm.need(lambda x: x[0] == 'd' and x[1] <= t + 2)})")
                addf(g0 + 3, "s_barrier")
            if n + WD < 32 * 15:
                addf(g0 + 0, w_read(n + WD, 0))
                addf(g0 + 1, w_read(n + WD, 1))
        addf(0 * 4 + 3, set_m0(t + LA))
        ops = []
        for i in range(4):
            if t + TL < 32:
                ops.append(x_load(t + TL, i))
            ops.append(dma(t + LA, i))
        if PF1 and t % 4 == 1:
            ops.append(pf((t % 8) // 4))
        for k, op in enumerate(ops):
            addf((1 + k) * 4 + 2, op)
        emit_slots(A, mf, fill)

    bodies = []
    for it in range(4):
        B = Asm()
        for t in range(it * 8, it * 8 + 8):
            kstep(B, t)
        bodies.append(B.L)
    assert bodies[0] == bodies[1] == bodies[2], "loop bodies differ"
    bodies = [xfilter(b) for b in bodies]
    A(f"s_mov_b32 s{SCNT}, 3")
    A("L_k1_g1:")
    A.L += bodies[0]
    A(f"s_sub_u32 s{SCNT}, s{SCNT}, 1\ns_cmp_lg_u32 s{SCNT}, 0\ns_cbranch_scc1 L_k1_g1")
    A.L += bodies[3]
    stamp(A, 2, 1)

    QA = 192
    A(f"s_mov_b32 s44, {f2u(SC):#x}\ns_mov_b32 s45, {f2u(SC):#x}")
    A("s_nop 7")
    for T in range(8):
        for u in range(2):
            a0 = acc(T, 2 * u); a1 = acc(T, 2 * u + 1)
            for a in (a0, a1):
                A(f"v_pk_mul_f32 v[{a}:{a+1}], v[{a}:{a+1}], s[44:45]")
                A(f"v_pk_mul_f32 v[{a+2}:{a+3}], v[{a+2}:{a+3}], s[44:45]")
            for a in (a0, a1):
                A(f"v_cvt_pk_bf16_f32 v{a}, v{a}, v{a+1}")
                A(f"v_cvt_pk_bf16_f32 v{a+1}, v{a+2}, v{a+3}")
        for u in range(2):
            a0 = acc(T, 2 * u); a1 = acc(T, 2 * u + 1)
            if u == 1: A("s_nop 0")
            A(f"v_permlane16_swap_b32 v{a0}, v{a1}")
            A(f"v_permlane16_swap_b32 v{a0+1}, v{a1+1}")
        for u in range(2):
            a0 = acc(T, 2 * u); a1 = acc(T, 2 * u + 1)
            q = QA + (u * 8 + T) * 4
            A(f"v_accvgpr_write_b32 a{q}, v{a0}\nv_accvgpr_write_b32 a{q+1}, v{a0+1}")
            A(f"v_accvgpr_write_b32 a{q+2}, v{a1}\nv_accvgpr_write_b32 a{q+3}, v{a1+1}")
    for r in range(128):
        A(f"v_accvgpr_write_b32 a{r}, 0")
    c1 = -2.0 * math.log2(math.e) * math.sqrt(2.0 / math.pi)
    c2 = c1 * 0.044715
    A(f"s_mov_b32 s44, {f2u(c2):#x}\ns_mov_b32 s45, {f2u(c2):#x}")
    A(f"v_mov_b32 v16, {f2u(c1):#x}\nv_mov_b32 v17, {f2u(c1):#x}")
    A(f"s_mul_i32 s54, s33, {112*4096}\ns_add_u32 s54, s54, {WS_H}")
    A("s_mul_i32 s55, s34, 7\ns_add_u32 s56, s55, 6\ns_lshl_b32 s56, s56, 12\ns_add_u32 s56, s56, s54")
    A("s_mul_i32 s57, s35, 3\ns_add_u32 s55, s55, s57\ns_lshl_b32 s55, s55, 12\ns_add_u32 s55, s55, s54")
    A("s_lshl_b32 s57, s35, 3\nv_add_u32 v11, s57, v8")
    def gelu4(a, t, dst):
        for h in (0, 2):
            A(f"v_pk_mul_f32 v[{t+h}:{t+h+1}], v[{a+h}:{a+h+1}], v[{a+h}:{a+h+1}]")
        for h in (0, 2):
            A(f"v_pk_fma_f32 v[{t+h}:{t+h+1}], v[{t+h}:{t+h+1}], s[44:45], v[16:17]")
        for h in (0, 2):
            A(f"v_pk_mul_f32 v[{t+h}:{t+h+1}], v[{t+h}:{t+h+1}], v[{a+h}:{a+h+1}]")
        for r in range(4):
            A(f"v_exp_f32 v{t+r}, v{t+r}")
        A("s_nop 0")
        for h in (0, 2):
            A(f"v_pk_add_f32 v[{t+h}:{t+h+1}], v[{t+h}:{t+h+1}], 1.0 op_sel_hi:[1,0]")
        for r in range(4):
            A(f"v_rcp_f32 v{t+r}, v{t+r}")
        A("s_nop 0")
        for h in (0, 2):
            A(f"v_pk_mul_f32 v[{t+h}:{t+h+1}], v[{t+h}:{t+h+1}], v[{a+h}:{a+h+1}]")
        A(f"v_cvt_pk_bf16_f32 v{dst}, v{t}, v{t+1}\nv_cvt_pk_bf16_f32 v{dst+1}, v{t+2}, v{t+3}")
    k = 0
    for f in range(4):
        for tt in range(4):
            d = 32 + (k % 8) * 4; k += 1
            gelu4(acc(8 + 2 * f, tt), 20, d)
            if f < 3:
                gelu4(acc(8 + 2 * f + 1, tt), 24, d + 2)
                vm.issue(("h",))
                A(f"buffer_store_dwordx4 v[{d}:{d+3}], v{VX}, s[16:19], s55 offen offset:{tt*1024}")
            else:
                vm.issue(("h",))
                A(f"buffer_store_dwordx2 v[{d}:{d+1}], v11, s[16:19], s56 offen offset:{tt*1024}")
        if f < 2:
            A("s_add_u32 s55, s55, 4096")
    stamp(A, 3, 1)

    S = (64, 80); C = (96, 112); P = (128, 136); E = 144; TS = 160; LS = (162, 163); VKV = 164; TMP = 165
    O = 0; KA = 128; VA = 160
    SRING = 58
    SDM0 = 59
    def qk(u, first=False):
        out = []
        for T in range(8):
            c = ("0" if first else vr(C[u], 16)) if T == 0 else vr(S[u], 16)
            out.append(f"v_mfma_f32_32x32x16_bf16 {vr(S[u],16)}, {ar(KA+4*T,4)}, {ar(QA+(u*8+T)*4,4)}, {c}")
        return out
    def pv(u):
        out = []
        for s in range(2):
            for dt in range(4):
                o = ar(O + (u * 4 + dt) * 16, 16)
                out.append(f"v_mfma_f32_32x32x16_bf16 {o}, {ar(VA+(dt*2+s)*4,4)}, {vr(P[u]+4*s,4)}, {o}")
        return out
    pv_frag = [dt * 2 + s for s in range(2) for dt in range(4)]
    def k_read(T):
        return f"ds_read_b128 {ar(KA+4*T,4)}, v{VKV} offset:{T*1024}"
    def v_read(f):
        return f"ds_read_b128 {ar(VA+4*f,4)}, v{VKV} offset:{8192+f*1024}"
    def softmax_ops(u):
        g = [[] for _ in range(17)]
        for r in range(16):
            g[r].append(f"v_exp_f32 v{E+r}, v{S[u]+r}")
            if r == 1:
                g[r + 1].append(f"v_add_f32 v{TS}, v{E}, v{E+1}")
            elif r > 1:
                g[r + 1].append(f"v_add_f32 v{TS}, v{TS}, v{E+r}")
            if r & 1:
                g[r + 1].append(f"v_cvt_pk_bf16_f32 v{P[u]+(r>>1)}, v{E+r-1}, v{E+r}")
        return g
    site = [0]
    tramps = []
    def check(u):
        n = site[0]; site[0] += 1
        tramps.append((n, u))
        return [f"v_cmp_nle_f32 vcc, v{TS}, v{TMP+1}", f"s_cbranch_vccnz L_k1_tr{n}", f"L_k1_ret{n}:", f"v_add_f32 v{LS[u]}, v{LS[u]}, v{TS}"]

    A(f"v_mov_b32 v{TMP+1}, {f2u(THR):#x}")
    A(f"v_mov_b32 v{LS[0]}, 0\nv_mov_b32 v{LS[1]}, 0")
    A(f"v_mov_b32 v{VKV}, v{VX}")
    for T in range(8):
        A(k_read(T))
    A(f"v_add_u32 v{VKV}, {K1_SLOT}, v{VKV}")
    q0 = qk(0, True); q1 = qk(1, True)
    for T in range(8):
        A(f"s_waitcnt lgkmcnt({7-T})")
        A(q0[T])
    for T in range(8):
        A(q1[T])
        if T > 0: A(k_read(T - 1))
    A(k_read(7))
    for f in pv_frag:
        A(v_read(f))
    A("s_nop 7")
    for u in range(2):
        s = S[u]
        A(f"v_max3_f32 v{TMP}, v{s}, v{s+1}, v{s+2}")
        for r in range(3, 15, 2):
            A(f"v_max3_f32 v{TMP}, v{TMP}, v{s+r}, v{s+r+1}")
        A(f"v_max_f32 v{TMP}, v{TMP}, v{s+15}")
        A(f"v_mov_b32 v{E}, v{TMP}\ns_nop 1")
        A(f"v_permlane32_swap_b32 v{TMP}, v{E}\ns_nop 1")
        A(f"v_max_f32 v{TMP}, v{TMP}, v{E}")
        for r in range(16):
            A(f"v_sub_f32 v{s+r}, v{s+r}, v{TMP}")
        for r in range(16):
            A(f"v_sub_f32 v{C[u]+r}, 0, v{TMP}")
    for g in softmax_ops(0):
        for o in g: A(o)
        A("s_nop 0")
    for o in check(0): A(o)
    A(f"s_mov_b32 s{SRING}, {2*K1_SLOT}")
    A(f"s_mov_b32 s{SDM0}, {LA*K1_SLOT}")
    A(f"s_mov_b32 s{SCNT}, 15")
    stamp(A, 4, 1)

    def body(A, kt, last=False):
        mf = []; fill = {}
        def addf(g, s):
            fill.setdefault(g, []).append(s)
        if not last:
            seq = qk(0) + pv(0) + qk(1) + pv(1)
            for i, m in enumerate(seq):
                pre = []
                if i < 16:
                    pre.append(f"s_waitcnt lgkmcnt({15-i})")
                mf.append((pre, m))
            sm1 = softmax_ops(1); sm0 = softmax_ops(0)
            for g in range(16):
                for o in sm1[g]: addf(g, o)
            for o in sm1[16] : addf(15, "s_nop 0\n" + o if o == sm1[16][0] else o)
            for o in check(1): addf(15, o)
            for g in range(16):
                for o in sm0[g]: addf(16 + g, o)
            for o in sm0[16]: addf(31, "s_nop 0\n" + o if o == sm0[16][0] else o)
            for o in check(0): addf(31, o)
            addf(0, f"v_add_u32 v{VKV}, s{SRING}, v{VX}")
            addf(1, f"s_add_u32 s{SRING}, s{SRING}, {K1_SLOT}\ns_cmp_eq_u32 s{SRING}, {8*K1_SLOT}\ns_cselect_b32 s{SRING}, 0, s{SRING}")
            addf(14, lambda: f"s_waitcnt vmcnt({vm.need(lambda x: x[0] == 'd' and x[1] <= 32 + kt + 2)})")
            addf(14, "s_barrier")
            for T in range(8):
                addf(16 + T + 1, k_read(T))
            for i, f in enumerate(pv_frag):
                addf(min(24 + i + 1, 31), v_read(f))
            addf(2, f"s_add_u32 m0, s52, s{SDM0}")
            addf(3, f"s_add_u32 s{SDM0}, s{SDM0}, {K1_SLOT}\ns_cmp_eq_u32 s{SDM0}, {8*K1_SLOT}\ns_cselect_b32 s{SDM0}, 0, s{SDM0}")
            for i in range(4):
                addf(4 + 2 * i, dma(32 + kt + LA, i))
        else:
            seq = pv(0) + pv(1)
            sm1 = softmax_ops(1)
            for i, m in enumerate(seq):
                pre = []
                if i == 0:
                    pre.append("s_waitcnt lgkmcnt(0)")
                if i == 8:
                    pre.append("s_nop 1")
                mf.append((pre, m))
            for g in range(16):
                for o in sm1[g]: addf(g // 2, o if g % 2 == 0 else ("s_nop 0\n" + o if o == sm1[g][0] else o))
            for o in sm1[16]: addf(7, "s_nop 0\n" + o if o == sm1[16][0] else o)
            for o in check(1): addf(7, o)
        emit_slots(A, mf, fill)

    import re
    texts = []
    for kt in range(15):
        B = Asm(); s0 = site[0]; nt = len(tramps)
        body(B, kt)
        texts.append(B.L)
        if kt > 0:
            site[0] = s0; del tramps[nt:]
    def norm(L): return [re.sub(r"L_k1_(tr|ret)\d+", "L", l) for l in L]
    base = texts[0]
    for i, l in enumerate(base):
        if any(norm([t[i]]) != norm([l]) for t in texts):
            assert l.startswith("s_waitcnt vmcnt("), (l, [t[i] for t in texts])
            base[i] = "s_waitcnt vmcnt(%d)" % min(int(re.search(r"\((\d+)\)", t[i]).group(1)) for t in texts)
    A("L_k1_att:")
    A.L += base
    A(f"s_sub_u32 s{SCNT}, s{SCNT}, 1\ns_cmp_lg_u32 s{SCNT}, 0\ns_cbranch_scc1 L_k1_att")
    body(A, 15, last=True)
    stamp(A, 5, 1)
    A("v_bfe_u32 v11, v1, 4, 1\nv_lshlrev_b32 v11, 10, v11\nv_lshrrev_b32 v12, 5, v1\nv_lshl_add_u32 v11, v12, 8, v11\nv_and_b32 v12, 15, v1\nv_lshl_add_u32 v11, v12, 4, v11")
    A(f"s_lshl_b32 s54, s33, 19\ns_lshl_b32 s55, s30, 14\ns_add_u32 s54, s54, s55\ns_add_u32 s54, s54, {WS_O}")
    for u in range(2):
        A(f"v_mov_b32 v{TMP}, v{LS[u]}\ns_nop 1")
        A(f"v_permlane32_swap_b32 v{LS[u]}, v{TMP}\ns_nop 1")
        A(f"v_add_f32 v{LS[u]}, v{LS[u]}, v{TMP}")
        A(f"v_rcp_f32 v{168+2*u}, v{LS[u]}\ns_nop 0\nv_mov_b32 v{169+2*u}, v{168+2*u}")
    A("s_nop 7")
    k = 0
    for u in range(2):
        for dt in range(4):
            A(f"s_add_u32 s55, s54, {dt*4096}")
            t = 16 + (k % 2) * 16
            d = 48 + (k % 2) * 8
            k += 1
            for r in range(16):
                A(f"v_accvgpr_read_b32 v{t+r}, a{O+(u*4+dt)*16+r}")
            for r in range(0, 16, 2):
                A(f"v_pk_mul_f32 v[{t+r}:{t+r+1}], v[{t+r}:{t+r+1}], v[{168+2*u}:{169+2*u}]")
            for r in range(0, 16, 2):
                A(f"v_cvt_pk_bf16_f32 v{d+r//2}, v{t+r}, v{t+r+1}")
            for c in range(2):
                A(f"buffer_store_dwordx4 v[{d+4*c}:{d+4*c+3}], v11, s[16:19], s55 offen offset:{u*2048+c*512}")
    if STAMP:
        A("s_waitcnt vmcnt(0)")
    stamp(A, 6, 1)
    A("L_k1_end:\ns_endpgm")
    for n, u in tramps:
        A(f"L_k1_tr{n}:\ns_call_b64 s[60:61], L_k1_rare{u}\ns_branch L_k1_ret{n}")
    for u in range(2):
        s = S[u]
        A(f"L_k1_rare{u}:")
        A("s_nop 15\ns_nop 15")
        A(f"v_max3_f32 v{TMP}, v{s}, v{s+1}, v{s+2}")
        for r in range(3, 15, 2):
            A(f"v_max3_f32 v{TMP}, v{TMP}, v{s+r}, v{s+r+1}")
        A(f"v_max3_f32 v{TMP}, v{TMP}, v{s+15}, 0")
        A(f"v_mov_b32 v{E}, v{TMP}\ns_nop 1")
        A(f"v_permlane32_swap_b32 v{TMP}, v{E}\ns_nop 1")
        A(f"v_max_f32 v{TMP}, v{TMP}, v{E}")
        A(f"v_exp_f32 v{TS+1}, -v{TMP}\ns_nop 0")
        A(f"v_mul_f32 v{LS[u]}, v{LS[u]}, v{TS+1}")
        for r in range(64):
            a = O + u * 64 + r
            A(f"v_accvgpr_read_b32 v{E}, a{a}\ns_nop 0\nv_mul_f32 v{E}, v{E}, v{TS+1}\ns_nop 0\nv_accvgpr_write_b32 a{a}, v{E}")
        for r in range(16):
            A(f"v_sub_f32 v{C[u]+r}, v{C[u]+r}, v{TMP}")
            A(f"v_sub_f32 v{s+r}, v{s+r}, v{TMP}")
        for g in softmax_ops(u):
            for o in g: A(o)
            A("s_nop 0")
        A("s_nop 3")
        A("s_setpc_b64 s[60:61]")

K2_SLOT = 16896
K2_LDS = 8 * K2_SLOT
def gen_k2(A):
    global STAMP_V, STAMP_SRD, STAMP_OFF
    kernel_head(A, "k2_kernel")
    A("s_cmp_ge_u32 s2, 256\ns_cbranch_scc1 L_k2_end")
    A("s_load_dwordx2 s[4:5], s[0:1], 32")
    A("s_load_dwordx4 s[40:43], s[0:1], 64")
    A("s_load_dwordx2 s[6:7], s[0:1], 96")
    A("s_load_dwordx2 s[44:45], s[0:1], 0")
    A("s_load_dwordx2 s[46:47], s[0:1], 80")
    A("s_and_b32 s30, s2, 7\ns_lshr_b32 s31, s2, 3")
    A("s_lshr_b32 s32, s30, 2")
    A("s_and_b32 s30, s30, 3\ns_lshl_b32 s30, s30, 2\ns_lshr_b32 s33, s31, 3\ns_add_u32 s33, s33, s30")
    A("s_and_b32 s34, s31, 7")
    A("v_and_b32 v1, 63, v0")
    A("v_lshrrev_b32 v2, 6, v0\ns_nop 0\nv_readfirstlane_b32 s3, v2")
    A("s_lshr_b32 s35, s3, 1\ns_and_b32 s36, s3, 1")
    A("s_cmp_eq_u32 s32, 0\ns_cselect_b32 s37, 64, 56")
    A("v_bfe_u32 v2, v1, 4, 1\nv_lshlrev_b32 v2, 4, v2\nv_lshrrev_b32 v3, 5, v1\nv_lshl_add_u32 v2, v3, 3, v2")
    A("s_lshl_b32 s38, s36, 2\nv_add_u32 v2, s38, v2")
    A("v_lshlrev_b32 v4, 11, v2\nv_and_b32 v3, 15, v1\nv_lshl_add_u32 v4, v3, 4, v4")
    A("s_lshl_b32 s38, s34, 8\nv_add_u32 v4, s38, v4")
    for b in range(1, 4):
        A(f"v_add_u32 v{4+b}, {b*(2048-1056)}, v4")
    A("v_lshlrev_b32 v8, 4, v1")
    A("v_bfe_u32 v9, v1, 2, 3")
    A("s_movk_i32 s38, 1056\nv_mul_lo_u32 v9, v9, s38")
    A("v_lshrrev_b32 v10, 5, v1\nv_lshl_add_u32 v9, v10, 9, v9")
    A("v_and_b32 v10, 3, v1\nv_lshl_add_u32 v9, v10, 3, v9")
    A("s_mul_i32 s38, s35, 8448\nv_add_u32 v9, s38, v9")
    A(f"v_add_u32 v10, {4*K2_SLOT}, v9")
    VW = (4, 5, 6, 7); VX = 8; VTR = (9, 10)
    A("s_waitcnt lgkmcnt(0)")
    A("s_cmp_eq_u32 s32, 0")
    A("s_cselect_b32 s8, s4, s40\ns_cselect_b32 s9, s5, s41")
    A(f"s_cselect_b32 s10, {4096*1024*2:#x}, {3584*1024*2:#x}" if False else f"s_mov_b32 s10, {4096*1024*2:#x}\ns_cselect_b32 s10, s10, {3584*1024*2:#x}")
    A("s_mov_b32 s11, 0x20000")
    srd(A, 16, 6, 7, WS_SIZE)
    srd(A, 20, 42, 43, 1024 * 2)
    srd(A, 48, 44, 45, 2048 * 1024 * 2)
    srd(A, 52, 46, 47, 2048 * 1024 * 2)
    SX, SW, SM0, SCNT = 24, 25, 28, 29
    A(f"s_mul_i32 s38, s35, s37\ns_lshl_b32 s{SW}, s38, 16")
    A("s_lshl_b32 s39, s33, 1\ns_add_u32 s39, s39, s36")
    A("s_mul_i32 s56, s39, s37\ns_lshl_b32 s56, s56, 1\ns_add_u32 s56, s56, s38\ns_lshl_b32 s56, s56, 12")
    A(f"s_cmp_eq_u32 s32, 0\ns_mov_b32 s57, {WS_O}\ns_cselect_b32 s57, s57, {WS_H}\ns_add_u32 s{SX}, s56, s57")
    A(f"s_mul_i32 s{SM0}, s3, 4224")
    STAMP_V, STAMP_SRD, STAMP_OFF = 15, 16, 62
    if STAMP:
        A(f"s_lshl_b32 s62, s2, 2\ns_add_u32 s62, s62, s3\ns_lshl_b32 s62, s62, 6\ns_add_u32 s62, s62, {WS_STAMP + 65536}")
    stamp(A, 0, 2)
    ACC = 16
    def acc(T, tt): return ACC + (T * 4 + tt) * 4
    XR = 0; WR = 128; NW = 8; WD = 4
    vm = VMQ()
    NKS = 24
    def x_load(d, tt):
        def f():
            vm.issue(("x", d))
            s = f"buffer_load_dwordx4 {ar(XR + (d % 8) * 16 + tt * 4, 4)}, v{VX}, s[16:19], s{SX} offen offset:{tt*1024}"
            if tt == 3:
                s += f"\ns_add_u32 s{SX}, s{SX}, 4096"
            return s
        return f
    def dma(d, i):
        def f():
            vm.issue(("d", d))
            s = f"buffer_load_dwordx4 v{VW[i]}, s[8:11], s{SW} offen offset:{i*1056} lds"
            if i == 3:
                s += f"\ns_add_u32 s{SW}, s{SW}, 65536"
            return s
        return f
    def set_m0(d):
        return f"s_add_u32 m0, s{SM0}, {(d % 8) * K2_SLOT}"
    def w_read(n, j):
        ks, T = divmod(n, 8)
        slot = ks % 8
        off = (slot % 4) * K2_SLOT + j * 256 + T * 32
        return f"ds_read_b64_tr_b16 {ar(WR + (n % NW) * 4 + 2 * j, 2)}, v{VTR[slot // 4]} offset:{off}"
    for t in range(-LA, 0):
        A(set_m0(t + LA))
        for i in range(4):
            A(x_load(t + TL, i)())
            A(dma(t + LA, i)())
    for r in range(ACC, ACC + 128):
        A(f"v_mov_b32 v{r}, 0")
    A(f"s_waitcnt vmcnt({vm.need(lambda t: t[0] == 'd' and t[1] <= 1)})")
    A("s_barrier")
    for n in range(WD):
        A(w_read(n, 0)); A(w_read(n, 1))
    stamp(A, 1, 2)
    def kstep(A, t):
        mf = []; fill = {}
        def addf(g, s):
            fill.setdefault(g, []).append(s)
        for T in range(8):
            n = t * 8 + T
            for tt in range(4):
                pre = []
                if tt == 0:
                    out = 2 * min(WD - 1, NKS * 8 - 1 - n)
                    if T == 0:
                        pre.append(lambda t=t, out=out: f"s_waitcnt vmcnt({vm.need(lambda x: x[0] == 'x' and x[1] == t)}) lgkmcnt({out})")
                    else:
                        pre.append(f"s_waitcnt lgkmcnt({out})")
                a = acc(T, tt)
                mf.append((pre, f"v_mfma_f32_16x16x32_bf16 v[{a}:{a+3}], {ar(WR + (n % NW) * 4, 4)}, {ar(XR + (t % 8) * 16 + tt * 4, 4)}, v[{a}:{a+3}]"))
            g0 = T * 4
            if n + WD < NKS * 8:
                addf(g0 + 0, w_read(n + WD, 0))
                addf(g0 + 1, w_read(n + WD, 1))
        ops = []
        if t + LA < NKS:
            for i in range(4):
                ops.append(x_load(t + TL, i))
                ops.append(dma(t + LA, i))
            addf(3, set_m0(t + LA))
        for k, op in enumerate(ops):
            addf(k * 4 + 2, op)
        if t % 2 == 1 and t + 1 < NKS:
            g0 = (8 - WD - 1) * 4
            addf(g0 + 3, lambda t=t: f"s_waitcnt vmcnt({vm.need(lambda x: x[0] == 'd' and x[1] <= t + 2)})")
            addf(g0 + 3, "s_barrier")
        emit_slots(A, mf, fill)
    bodies = []
    for it in range(3):
        B = Asm()
        for t in range(it * 8, it * 8 + 8):
            kstep(B, t)
        bodies.append(B.L)
    assert bodies[0] == bodies[1]
    bodies = [xfilter(b) for b in bodies]
    A(f"s_lshr_b32 s{SCNT}, s37, 3\ns_sub_u32 s{SCNT}, s{SCNT}, 1")
    A("L_k2_g:")
    A.L += bodies[0]
    A(f"s_sub_u32 s{SCNT}, s{SCNT}, 1\ns_cmp_lg_u32 s{SCNT}, 0\ns_cbranch_scc1 L_k2_g")
    A.L += bodies[2]
    stamp(A, 2, 2)
    A("s_barrier")
    A("s_lshl_b32 s38, s3, 14\nv_add_u32 v11, s38, v8")
    A("s_xor_b32 s38, s3, 2\ns_lshl_b32 s38, s38, 14\nv_add_u32 v12, s38, v8")
    A("s_nop 4")
    A("s_cmp_eq_u32 s35, 0\ns_cbranch_scc1 L_k2_red0")
    for i in range(16):
        A(f"ds_write_b128 v11, v[{ACC+4*i}:{ACC+4*i+3}] offset:{i*1024}")
    A("s_waitcnt lgkmcnt(0)")
    for i in range(64):
        A(f"v_mov_b32 v{ACC+i}, v{ACC+64+i}")
    A("s_branch L_k2_red1")
    A("L_k2_red0:")
    for i in range(16):
        A(f"ds_write_b128 v11, v[{ACC+64+4*i}:{ACC+64+4*i+3}] offset:{i*1024}")
    A("s_waitcnt lgkmcnt(0)")
    A("L_k2_red1:")
    A("s_barrier")
    for i in range(16):
        A(f"ds_read_b128 v[{ACC+64+4*i}:{ACC+64+4*i+3}], v12 offset:{i*1024}")
    A("s_lshl_b32 s38, s33, 3\ns_add_u32 s38, s38, s34")
    A(f"s_lshl_b32 s56, s38, 7\ns_add_u32 s56, s56, {WS_FLAG}")
    A(f"s_lshl_b32 s38, s38, 2\ns_add_u32 s38, s38, s3\ns_lshl_b32 s38, s38, 13\ns_add_u32 s57, s38, {WS_G}")
    A("s_add_u32 s58, s57, 4096")
    A("s_cmp_eq_u32 s32, 0\ns_cbranch_scc1 L_k2_s")
    A("v_lshrrev_b32 v11, 4, v1\nv_lshlrev_b32 v11, 3, v11")
    A("s_lshl_b32 s38, s34, 8\ns_lshl_b32 s39, s35, 7\ns_add_u32 s38, s38, s39")
    for T in range(4):
        A(f"buffer_load_dwordx2 v[{160+2*T}:{161+2*T}], v11, s[20:23], s38 offen offset:{T*32}")
    A("s_waitcnt vmcnt(0)")
    for T in range(4):
        d = 144 + 4 * T; s = 160 + 2 * T
        A(f"v_lshlrev_b32 v{d}, 16, v{s}\nv_and_b32 v{d+1}, 0xffff0000, v{s}")
        A(f"v_lshlrev_b32 v{d+2}, 16, v{s+1}\nv_and_b32 v{d+3}, 0xffff0000, v{s+1}")
    A("s_waitcnt lgkmcnt(0)")
    nl2e = -math.log2(math.e)
    A(f"s_mov_b32 s60, {f2u(nl2e):#x}\ns_mov_b32 s61, {f2u(nl2e):#x}")
    for i in range(16):
        a = ACC + 4 * i; b = ACC + 64 + 4 * i; bi = 144 + 4 * (i // 4); t = 168
        for h in (0, 2):
            A(f"v_pk_add_f32 v[{a+h}:{a+h+1}], v[{a+h}:{a+h+1}], v[{b+h}:{b+h+1}]")
        for h in (0, 2):
            A(f"v_pk_add_f32 v[{a+h}:{a+h+1}], v[{a+h}:{a+h+1}], v[{bi+h}:{bi+h+1}]")
        for h in (0, 2):
            A(f"v_pk_mul_f32 v[{t+h}:{t+h+1}], v[{a+h}:{a+h+1}], s[60:61]")
        for r in range(4):
            A(f"v_exp_f32 v{t+r}, v{t+r}")
        A("s_nop 0")
        for h in (0, 2):
            A(f"v_pk_add_f32 v[{t+h}:{t+h+1}], v[{t+h}:{t+h+1}], 1.0 op_sel_hi:[1,0]")
        for r in range(4):
            A(f"v_rcp_f32 v{t+r}, v{t+r}")
        A("s_nop 0")
        for h in (0, 2):
            A(f"v_pk_mul_f32 v[{t+h}:{t+h+1}], v[{t+h}:{t+h+1}], v[{a+h}:{a+h+1}]")
        d = 176 + 2 * i
        A(f"v_cvt_pk_bf16_f32 v{d}, v{t}, v{t+1}\nv_cvt_pk_bf16_f32 v{d+1}, v{t+2}, v{t+3}")
        if i & 1:
            k = i // 2
            A(f"buffer_store_dwordx4 v[{d-2}:{d+1}], v8, s[16:19], s{57 + k // 4} offen offset:{(k % 4)*1024} sc0 sc1")
    A("s_waitcnt vmcnt(0)")
    stamp(A, 3, 2)
    A("s_barrier")
    A("s_cmp_lg_u32 s3, 0\ns_cbranch_scc1 L_k2_end")
    A("v_mov_b32 v11, 1\nv_mov_b32 v12, 0")
    A("s_mov_b64 exec, 1")
    A("buffer_store_dword v11, v12, s[16:19], s56 offen sc0 sc1")
    A("s_endpgm")
    A("L_k2_s:")
    A("v_and_b32 v11, 15, v1\nv_lshlrev_b32 v11, 11, v11")
    A("v_bfe_u32 v12, v1, 4, 1\nv_lshl_add_u32 v11, v12, 5, v11")
    A("v_lshrrev_b32 v12, 5, v1\nv_lshl_add_u32 v11, v12, 4, v11")
    A("s_lshl_b32 s38, s39, 17\ns_lshl_b32 s59, s34, 8\ns_add_u32 s38, s38, s59\ns_lshl_b32 s59, s35, 7\ns_add_u32 s38, s38, s59")
    for tt in range(4):
        A(f"s_add_u32 s{64+tt}, s38, {tt*32768}")
    for tt in range(4):
        for pT in range(2):
            d = 208 + (pT * 4 + tt) * 4
            A(f"buffer_load_dwordx4 v[{d}:{d+3}], v11, s[48:51], s{64+tt} offen offset:{pT*64}")
    A("s_cmp_lg_u32 s3, 0\ns_cbranch_scc1 L_k2_polled")
    A("v_mov_b32 v12, 0\ns_mov_b32 s60, 0")
    A("L_k2_poll:")
    A("buffer_load_dword v13, v12, s[16:19], s56 offen sc0 sc1")
    A("s_waitcnt vmcnt(0)")
    A("v_readfirstlane_b32 s59, v13")
    A("s_cmp_eq_u32 s59, 1\ns_cbranch_scc1 L_k2_polled")
    A("s_add_u32 s60, s60, 1\ns_cmp_ge_u32 s60, 0x100000\ns_cbranch_scc1 L_k2_polled")
    A("s_sleep 2\ns_branch L_k2_poll")
    A("L_k2_polled:")
    A("s_barrier")
    for k in range(8):
        d = 176 + 4 * k
        A(f"buffer_load_dwordx4 v[{d}:{d+3}], v8, s[16:19], s{57 + k // 4} offen offset:{(k % 4)*1024} sc0 sc1")
    A("s_waitcnt lgkmcnt(0)")
    for i in range(16):
        a = ACC + 4 * i; b = ACC + 64 + 4 * i
        for h in (0, 2):
            A(f"v_pk_add_f32 v[{a+h}:{a+h+1}], v[{a+h}:{a+h+1}], v[{b+h}:{b+h+1}]")
    A("s_waitcnt vmcnt(0)")
    for i in range(16):
        a = ACC + 4 * i; g = 176 + 2 * i; t = 168
        A(f"v_lshlrev_b32 v{t}, 16, v{g}\nv_and_b32 v{t+1}, 0xffff0000, v{g}")
        A(f"v_lshlrev_b32 v{t+2}, 16, v{g+1}\nv_and_b32 v{t+3}, 0xffff0000, v{g+1}")
        for h in (0, 2):
            A(f"v_pk_mul_f32 v[{a+h}:{a+h+1}], v[{a+h}:{a+h+1}], v[{t+h}:{t+h+1}]")
        A(f"v_cvt_pk_bf16_f32 v{a}, v{a}, v{a+1}\nv_cvt_pk_bf16_f32 v{a+1}, v{a+2}, v{a+3}")
    A("s_nop 1")
    for pT in range(2):
        for tt in range(4):
            a0 = ACC + 4 * ((2 * pT) * 4 + tt); a1 = ACC + 4 * ((2 * pT + 1) * 4 + tt)
            A(f"v_permlane16_swap_b32 v{a0}, v{a1}\nv_permlane16_swap_b32 v{a0+1}, v{a1+1}")
    A("s_nop 1")
    for pT in range(2):
        for tt in range(4):
            a0 = ACC + 4 * ((2 * pT) * 4 + tt); a1 = ACC + 4 * ((2 * pT + 1) * 4 + tt)
            xv = 208 + (pT * 4 + tt) * 4
            src = [a0, a0 + 1, a1, a1 + 1]
            for k in range(4):
                t = 168; u = 170
                A(f"v_lshlrev_b32 v{t}, 16, v{src[k]}\nv_and_b32 v{t+1}, 0xffff0000, v{src[k]}")
                A(f"v_lshlrev_b32 v{u}, 16, v{xv+k}\nv_and_b32 v{u+1}, 0xffff0000, v{xv+k}")
                A(f"v_pk_add_f32 v[{t}:{t+1}], v[{t}:{t+1}], v[{u}:{u+1}]")
                A(f"v_cvt_pk_bf16_f32 v{xv+k}, v{t}, v{t+1}")
            A(f"buffer_store_dwordx4 v[{xv}:{xv+3}], v11, s[52:55], s{64+tt} offen offset:{pT*64}")
    if STAMP:
        A("s_waitcnt vmcnt(0)")
    stamp(A, 3, 2)
    A("L_k2_end:\ns_endpgm")

def main():
    global STAMP
    STAMP = "--stamp" in sys.argv
    ref = open(f"cdna_kernels/{NAME}.s.ref").read().split("\n")
    head = [l for l in ref if l.startswith(";") and "@launch" not in l and "Override launch" not in l and "grid=ceil" not in l]
    A = Asm()
    gen_k0(A); gen_k1(A); gen_k2(A)
    out = "\n".join(head) + "\n"
    out += "; @launch kernel=k0_kernel grid=(256,1,1) block=(256,1,1) lds=0\n"
    out += f"; @launch kernel=k1_kernel grid=(256,1,1) block=(256,1,1) lds={K1_LDS}\n"
    out += f"; @launch kernel=k2_kernel grid=(256,1,1) block=(256,1,1) lds={K2_LDS}\n"
    out += '.amdgcn_target "amdgcn-amd-amdhsa--gfx950"\n.text\n'
    out += A.text() + "\n"
    out += '.section .rodata,"a"\n'
    for n, v, a in (("k0_kernel", 84, 84), ("k1_kernel", 512, 256), ("k2_kernel", 256 + 160, 256)):
        out += ".p2align 6\n" + kernel_desc(n, v, a) + "\n"
    sys.stdout.write(out)

main()
```
